```python
import torch

def _softmax(x, axis=-1):
    return torch.softmax(x, dim=axis)
def _gelu(x):
    return torch.nn.functional.gelu(x, approximate="tanh")
def _silu(x):
    return torch.nn.functional.silu(x)
def _sigmoid(x):
    return torch.sigmoid(x)
def _layernorm(x, axis=-1, eps=1e-5):
    m = x.mean(dim=axis, keepdim=True)
    v = x.var(dim=axis, keepdim=True, unbiased=False)
    return (x - m) / torch.sqrt(v + eps)
def _scatter_add(tgt, idx, src, axis=0):
    return tgt.clone().index_add_(axis, idx, src)
def _segment_sum(src, seg, n):
    out = torch.zeros((n,) + src.shape[1:], dtype=src.dtype)
    return out.index_add_(0, seg, src)
def _pad(x, pw):
    flat = tuple(v for pair in reversed(pw) for v in pair)
    return torch.nn.functional.pad(x, flat)

kernel_name = 'standalone__modern_conv_block_slak__vision'

def setup_inputs():

    _w = (lambda a: (lambda t: t.to(torch.bfloat16) if t.is_floating_point() else t)(torch.as_tensor(a)))
    H = W = 224
    C = 192
    K = 3
    return {
        "x": _w((lambda *s: torch.randn(*s, dtype=torch.bfloat16) * 0.05)(1, H, W, C)),
        "dw": _w((lambda *s: torch.randn(*s, dtype=torch.bfloat16) * 0.05)(K, K, C)),
        "w1": _w((lambda *s: torch.randn(*s, dtype=torch.bfloat16) * 0.05)(C, 4 * C)),
        "w2": _w((lambda *s: torch.randn(*s, dtype=torch.bfloat16) * 0.05)(4 * C, C)),
        "grn_g": _w((lambda *s: torch.randn(*s, dtype=torch.bfloat16) * 0.05)(4 * C)),
        "grn_b": _w((lambda *s: torch.randn(*s, dtype=torch.bfloat16) * 0.05)(4 * C)),
    }

def reference(x, dw, w1, w2, grn_g, grn_b):
    B, H, W, C = x.shape
    K = dw.shape[0]
    pad = K // 2
    xp = _pad(x, ((0,0),(pad,pad),(pad,pad),(0,0)))
    out = torch.zeros_like(x)
    for i in range(K):
        for j in range(K):
            out = out + xp[:, i:i+H, j:j+W, :] * dw[i, j][None, None, None, :]
    h = _layernorm(out, axis=-1)
    h = _gelu(h @ w1)
    gx = torch.sqrt((h * h).sum(axis=(1, 2), keepdims=True) + 1e-6)
    nx = gx / (gx.mean(axis=-1, keepdims=True) + 1e-6)
    h = grn_g[None, None, None, :] * (h * nx) + grn_b[None, None, None, :] + h
    return x + h @ w2
```

```python
import re

def v(n): return f"v{n}"
def a(n): return f"a{n}"
def s(n): return f"s{n}"
def vr(n, c): return f"v[{n}:{n+c-1}]" if c > 1 else f"v{n}"
def ar(n, c): return f"a[{n}:{n+c-1}]" if c > 1 else f"a{n}"
def sr(n, c): return f"s[{n}:{n+c-1}]" if c > 1 else f"s{n}"

class R:
    def __init__(self, kind, base, cnt=1):
        self.kind, self.base, self.cnt = kind, base, cnt
    def __str__(self):
        return f"{self.kind}[{self.base}:{self.base+self.cnt-1}]" if self.cnt > 1 else f"{self.kind}{self.base}"
    def __getitem__(self, i):
        if isinstance(i, slice):
            st = i.start or 0; en = i.stop if i.stop is not None else self.cnt
            assert 0 <= st < en <= self.cnt
            return R(self.kind, self.base + st, en - st)
        assert 0 <= i < self.cnt, (i, self.cnt)
        return R(self.kind, self.base + i, 1)
    def regs(self): return {f"{self.kind}{self.base+i}" for i in range(self.cnt)}

_REG = re.compile(r"^-?\|?(?:abs\()?([vas])(?:(\d+)|\[(\d+):(\d+)\])\)?\|?$")
def parse_reg(tok):
    tok = tok.strip()
    if tok in ("vcc", "exec", "m0", "scc"):
        if tok == "vcc": return {"vcc"}
        return {tok}
    if tok in ("vcc_lo", "vcc_hi"): return {"vcc"}
    if tok in ("exec_lo", "exec_hi"): return {"exec"}
    m = _REG.match(tok)
    if not m: return set()
    k = m.group(1)
    if m.group(2) is not None: return {f"{k}{int(m.group(2))}"}
    return {f"{k}{i}" for i in range(int(m.group(3)), int(m.group(4)) + 1)}

TRANS = ("v_exp_f32", "v_log_f32", "v_rcp_f32", "v_rsq_f32", "v_sqrt_f32", "v_sin_f32", "v_cos_f32")

class Ins:
    __slots__ = ("text", "op", "ops", "defs", "uses", "kind", "meta", "passes")
    def __init__(self, text, **meta):
        self.text = text.strip()
        self.meta = meta
        self.defs = set(); self.uses = set(); self.kind = "other"; self.passes = 0
        t = self.text
        if t.endswith(":"):
            self.kind = "label"; self.op = t; self.ops = []; return
        if t.startswith("."):
            self.kind = "directive"; self.op = t; self.ops = []; return
        if t.startswith(";"):
            self.kind = "comment"; self.op = t; self.ops = []; return
        parts = t.split(None, 1)
        self.op = op = parts[0]
        rest = parts[1] if len(parts) > 1 else ""
        rest = rest.split(";")[0]
        ops = []; cur = ""; depth = 0
        for ch in rest:
            if ch == "[": depth += 1
            if ch == "]": depth -= 1
            if ch == "," and depth == 0: ops.append(cur.strip()); cur = ""
            else: cur += ch
        if cur.strip(): ops.append(cur.strip())
        mods = ""
        if ops:
            sp = ops[-1].split(None, 1)
            if len(sp) > 1 and not sp[0].endswith(":"):
                ops[-1] = sp[0]; mods = sp[1]
        self.ops = ops
        self.meta.setdefault("mods", mods)
        P = [parse_reg(o) for o in ops]
        base = op.replace("_e32", "").replace("_e64", "").replace("_dpp", "").replace("_sdwa", "")
        U = lambda idx: set().union(*[P[i] for i in idx if i < len(P)]) if idx else set()
        if op.startswith("v_mfma"):
            self.kind = "mfma"; self.defs = P[0]; self.uses = U([1, 2, 3])
            self.passes = 8 if "32x32" in op else 4
            self.meta["srcC"] = P[3]; self.meta["srcAB"] = U([1, 2])
        elif op.startswith("v_cmp"):
            self.kind = "valu"; self.defs = P[0]; self.uses = U([1, 2]) | {"exec"}
        elif op.startswith("v_readfirstlane") or op.startswith("v_readlane"):
            self.kind = "valu"; self.defs = P[0]; self.uses = U([1, 2]); self.meta["readlane"] = True
        elif op.startswith("v_permlane"):
            self.kind = "valu"; self.defs = U([0, 1]); self.uses = U([0, 1]); self.meta["permlane"] = True
        elif op.startswith("v_"):
            self.kind = "valu"
            self.defs = set(P[0]); self.uses = U(range(1, len(P)))
            if base in TRANS: self.kind = "trans"
            if op.startswith("v_pk_"): self.meta["pk"] = True
            if base in ("v_fmac_f32", "v_dot2c_f32_bf16"): self.uses |= P[0]
            if "_dpp" in op or "row_" in mods or "quad_perm" in mods:
                self.meta["dpp"] = True; self.uses |= P[0]
                self.meta["dppsrc"] = P[1]
            if base in ("v_add_co_u32", "v_addc_co_u32", "v_sub_co_u32"):
                self.defs = U([0, 1]); self.uses = U(range(2, len(P)))
            if base == "v_cndmask_b32" and len(P) == 3: self.uses |= {"vcc"}
        elif op.startswith("ds_read") or op.startswith("ds_bpermute") or op.startswith("ds_swizzle"):
            self.kind = "ds_read"; self.defs = P[0]; self.uses = U(range(1, len(P)))
            if "d16" in op: self.uses |= P[0]
        elif op.startswith("ds_write") or op.startswith("ds_add"):
            self.kind = "ds_write"; self.uses = U(range(len(P)))
        elif op.startswith("buffer_load"):
            if " lds" in (" " + mods):
                self.kind = "dma"; self.uses = U(range(len(P))) | {"m0"}
            else:
                self.kind = "vm_load"; self.defs = P[0]; self.uses = U(range(1, len(P)))
        elif op.startswith("buffer_store") or op.startswith("buffer_atomic"):
            self.kind = "vm_store"; self.uses = U(range(len(P)))
            self.meta["data"] = P[0]
        elif op.startswith("global_load_lds"):
            self.kind = "dma"; self.uses = U(range(len(P))) | {"m0"}
        elif op.startswith("global_load"):
            self.kind = "vm_load"; self.defs = P[0]; self.uses = U(range(1, len(P)))
        elif op.startswith("global_store") or op.startswith("global_atomic"):
            self.kind = "vm_store"; self.uses = U(range(len(P)))
            self.meta["data"] = P[1]
        elif op.startswith("s_load") or op in ("s_memtime", "s_memrealtime"):
            self.kind = "smem"; self.defs = P[0]; self.uses = U(range(1, len(P)))
        elif op == "s_waitcnt": self.kind = "waitcnt"
        elif op == "s_barrier": self.kind = "barrier"
        elif op == "s_nop": self.kind = "nop"; self.meta["n"] = int(ops[0]) + 1
        elif op in ("s_endpgm", "s_sleep", "s_setprio"): self.kind = "sopp"
        elif op.startswith("s_cbranch") or op == "s_branch":
            self.kind = "branch"
            if "vcc" in op: self.uses = {"vcc"}
            if "exec" in op: self.uses = {"exec"}
            if "scc" in op: self.uses = {"scc"}
        elif op.startswith("s_cmp") or op.startswith("s_bitcmp"):
            self.kind = "salu"; self.defs = {"scc"}; self.uses = U(range(len(P)))
        elif op.startswith("s_"):
            self.kind = "salu"; self.defs = set(P[0]) if P else set(); self.uses = U(range(1, len(P)))
            if "saveexec" in op: self.defs |= {"exec"}; self.uses |= {"exec"}
            if op in ("s_cselect_b32", "s_cselect_b64", "s_addc_u32"): self.uses |= {"scc"}
            if op not in ("s_mov_b32", "s_mov_b64", "s_getreg_b32", "s_cselect_b32", "s_cselect_b64", "s_mul_i32", "s_mul_hi_u32", "s_movk_i32", "s_getpc_b64"):
                self.defs |= {"scc"}
        else:
            raise ValueError("unknown instruction: " + text)

    def is_valu(self): return self.kind in ("valu", "trans")
    def is_real(self): return self.kind not in ("label", "directive", "comment", "pseudo")
    def size(self):
        if not self.is_real(): return 0
        op = self.op; ops = self.ops
        if self.kind in ("mfma", "ds_read", "ds_write", "dma", "vm_load", "vm_store", "smem"): return 8
        if self.kind in ("waitcnt", "barrier", "nop", "sopp", "branch"): return 4
        lit = any(is_literal(o) for o in ops)
        if self.kind == "salu":
            if op in ("s_movk_i32", "s_getreg_b32"): return 4
            return 8 if lit else 4
        if op.endswith("_e64") or op.endswith("_dpp") or op.endswith("_sdwa") or self.meta.get("dpp"): return 8
        base = op.replace("_e32", "")
        if base in VOP3_ONLY or op.startswith("v_pk_") or op.startswith("v_accvgpr_write") or op.startswith("v_accvgpr_read"): return 8
        if base in ("v_fmaak_f32", "v_fmamk_f32"): return 8
        if op.startswith("v_cmp"):
            if ops[0] != "vcc": return 8
            if ops[2][0] != "v": return 8
            if any(m in self.text for m in ("-v", "|v")): return 8
            return 8 if lit else 4
        if base == "v_cndmask_b32":
            if len(ops) == 4 and ops[3] != "vcc": return 8
            return 8 if lit else 4
        if base in VOP1:
            if ops[1].startswith("-") or ops[1].startswith("|"): return 8
            return 8 if lit else 4
        if base in VOP2:
            if any(o.startswith("-v") or o.startswith("|") or o.startswith("-s") for o in ops): return 8
            if not ops[2].startswith("v"): return 8
            if self.meta.get("mods"): return 8
            return 8 if lit else 4
        raise ValueError("size unknown: " + self.text)

VOP1 = {"v_mov_b32", "v_exp_f32", "v_rcp_f32", "v_rsq_f32", "v_sqrt_f32", "v_log_f32", "v_cvt_f32_u32", "v_cvt_u32_f32",
        "v_cvt_f32_i32", "v_readfirstlane_b32", "v_permlane32_swap_b32", "v_permlane16_swap_b32", "v_not_b32", "v_cvt_f32_bf16", "v_accvgpr_mov_b32"}
VOP2 = {"v_add_f32", "v_sub_f32", "v_subrev_f32", "v_mul_f32", "v_fmac_f32", "v_add_u32", "v_sub_u32", "v_subrev_u32", "v_lshlrev_b32",
        "v_lshrrev_b32", "v_ashrrev_i32", "v_and_b32", "v_or_b32", "v_xor_b32", "v_mul_u32_u24", "v_min_u32", "v_max_u32", "v_min_f32", "v_max_f32"}
VOP3_ONLY = {"v_fma_f32", "v_cvt_pk_bf16_f32", "v_lshl_add_u32", "v_add_lshl_u32", "v_lshl_or_b32", "v_and_or_b32", "v_or3_b32", "v_add3_u32",
             "v_bfe_u32", "v_mad_u32_u24", "v_mul_lo_u32", "v_mul_hi_u32", "v_xad_u32", "v_perm_b32", "v_readlane_b32", "v_writelane_b32", "v_med3_f32", "v_bfi_b32"}

def is_literal(o):
    o = o.strip()
    if o in ("0.5", "-0.5", "1.0", "-1.0", "2.0", "-2.0", "4.0", "-4.0"): return False
    if re.match(r"^-?(0x[0-9a-fA-F]+|\d+)$", o):
        x = int(o, 0)
        return not (-16 <= x <= 64)
    if re.match(r"^-?\d+\.\d+(e-?\d+)?$", o): return True
    return False

class Pseudo(Ins):
    def __init__(self, what, **meta):
        self.text = f"; <{what}>"; self.op = what; self.ops = []; self.defs = set(); self.uses = set()
        self.kind = "pseudo"; self.meta = meta; self.passes = 0

def need(*regs):
    u = set()
    for r in regs: u |= (r.regs() if isinstance(r, R) else parse_reg(str(r)))
    p = Pseudo("need"); p.uses = u
    return p
def wait_lds_all(): return Pseudo("wait_lgkm0")
def wait_vm_token(tok): return Pseudo("wait_vm", token=tok)
def wait_lds_token(tok): return Pseudo("wait_lds", token=tok)
def wait_vm_all(): return Pseudo("wait_vm0")
def align8(): return Pseudo("align8")
def cond_begin(): return Pseudo("cond_begin")
def cond_end(): return Pseudo("cond_end")

class Prog:
    def __init__(self): self.ins = []
    def __call__(self, text, **meta):
        for line in text.split("\n"):
            if line.strip(): self.ins.append(Ins(line, **meta))
    def add(self, x):
        if isinstance(x, (list, tuple)):
            for y in x: self.add(y)
        elif isinstance(x, str): self(x)
        else: self.ins.append(x)

def I(text, **meta): return Ins(text, **meta)

def insert_waits(ins):
    out = []
    lq = []
    vq = []
    def emit_wait(lg=None, vm=None):
        parts = []
        if vm is not None: parts.append(f"vmcnt({min(vm,63)})")
        if lg is not None: parts.append(f"lgkmcnt({min(lg,15)})")
        out.append(Ins("s_waitcnt " + " ".join(parts), auto=True))
    def trim(q, n):
        cnt = 0; keep = len(q)
        for i in range(len(q) - 1, -1, -1):
            if not q[i]["maybe"]:
                if cnt == n: break
                cnt += 1
            keep = i
        if n == 0: keep = len(q)
        del q[:keep]
    def after(q, idx):
        return sum(1 for e_ in q[idx + 1:] if not e_["maybe"])
    snap = []
    for x in ins:
        if x.kind == "pseudo" and x.op == "cond_begin":
            snap.append((list(lq), list(vq))); out.append(x); continue
        if x.kind == "pseudo" and x.op == "cond_end":
            l0, v0 = snap.pop()
            for q0, q in ((l0, lq), (v0, vq)):
                new = [dict(e_, maybe=True) for e_ in q if not any(e_ is o for o in q0)]
                q[:] = q0 + new
            out.append(x); continue
        touched = x.uses | x.defs
        lg = None; vm = None
        if x.kind == "pseudo":
            if x.op == "wait_lgkm0":
                if lq: lg = 0
            elif x.op == "wait_vm0":
                if vq: vm = 0
            elif x.op == "wait_vm":
                idx = [i for i, e in enumerate(vq) if e["token"] == x.meta["token"]]
                if idx: vm = after(vq, idx[-1])
            elif x.op == "wait_lds":
                idx = [i for i, e in enumerate(lq) if e["token"] == x.meta["token"]]
                if idx:
                    lg = after(lq, idx[-1])
                    if any(e["smem"] for e in lq): lg = 0
        if touched:
            idx = [i for i, e in enumerate(lq) if e["defs"] & touched]
            if idx:
                n = after(lq, idx[-1])
                if any(e["smem"] for e in lq): n = 0
                lg = n if lg is None else min(lg, n)
            idx = [i for i, e in enumerate(vq) if e["defs"] & touched]
            if idx:
                n = after(vq, idx[-1])
                vm = n if vm is None else min(vm, n)
        if lg is not None or vm is not None:
            emit_wait(lg, vm)
            if lg is not None: trim(lq, min(lg, 15))
            if vm is not None: trim(vq, min(vm, 63))
        if x.kind == "waitcnt":
            m = re.search(r"lgkmcnt\((\d+)\)", x.text)
            if m: trim(lq, int(m.group(1)))
            m = re.search(r"vmcnt\((\d+)\)", x.text)
            if m: trim(vq, int(m.group(1)))
        if x.kind in ("label", "branch") and not x.meta.get("nocheck"):
            pend = [e for e in lq + vq if e["defs"]]
            assert not pend, f"pending loads at {x.text}: {[e['ins'] for e in pend]}"
        if x.kind in ("ds_read", "ds_write"):
            lq.append(dict(defs=set(x.defs), token=x.meta.get("token"), smem=False, ins=x.text, maybe=bool(x.meta.get("maybe"))))
        elif x.kind == "smem":
            lq.append(dict(defs=set(x.defs), token=x.meta.get("token"), smem=True, ins=x.text, maybe=False))
        elif x.kind in ("vm_load", "vm_store", "dma"):
            vq.append(dict(defs=set(x.defs), token=x.meta.get("token"), smem=False, ins=x.text, maybe=bool(x.meta.get("maybe"))))
            assert len(vq) <= 63, "vmcnt overflow at " + x.text
        out.append(x)
    return out

def fix_hazards(ins, verbose=False):
    out = []
    hist = []
    pos = 0
    nins = 0
    def isv(r): return r[0] in "va" and r[1:].isdigit()
    def iss(r): return (r[0] == "s" and r[1:].isdigit()) or r == "vcc"
    MF_VALU = {4: 8, 8: 12}; MF_AB = {4: 8, 8: 12}; MF_COVER = {4: 6, 8: 10}; MF_CWAR = {4: 3, 8: 7}
    for x in ins:
        if not x.is_real():
            out.append(x); continue
        need_ws = 0; why = None
        for (p, ppos) in reversed(hist):
            dist = pos - ppos - 1 if p.kind != "nop" else None
            if dist is None: continue
            if dist >= 20: break
            req = 0
            pv = {r for r in p.defs if isv(r)}
            ps = {r for r in p.defs if iss(r)}
            if p.is_valu():
                if x.kind == "mfma" and pv & x.uses: req = max(req, 2)
                if x.meta.get("dpp") and pv & x.uses: req = max(req, 2)
                if x.meta.get("permlane") and pv & x.uses: req = max(req, 2)
                if x.meta.get("readlane") and pv & x.uses: req = max(req, 1)
                if p.kind == "trans" and x.is_valu() and x.kind != "trans" and pv & x.uses: req = max(req, 1)
                if p.kind == "trans" and x.kind == "trans" and pv & x.uses: req = max(req, 1)
                if ps and x.is_valu() and ps & x.uses: req = max(req, 4 if x.meta.get("readlane") else 2)
                if ps and x.kind in ("vm_load", "vm_store", "dma") and ps & x.uses: req = max(req, 5)
                if ps and x.kind in ("salu", "branch", "smem") and ps & x.uses: req = max(req, 2)
            if p.kind == "mfma":
                D = p.defs
                if x.kind == "mfma":
                    if D & x.meta["srcAB"]: req = max(req, MF_AB[p.passes])
                    c = x.meta["srcC"]
                    if D & c and not (c == D and x.passes == p.passes): req = max(req, MF_COVER[p.passes])
                    if D & x.defs and x.defs != D: req = max(req, MF_COVER[p.passes])
                elif x.is_valu() or x.kind in ("ds_read", "ds_write", "vm_load", "vm_store", "dma"):
                    if D & (x.uses | x.defs): req = max(req, MF_VALU[p.passes])
                if x.is_valu() and (p.meta["srcC"] & x.defs): req = max(req, MF_CWAR[p.passes])
            if p.kind == "vm_store" and ("x3" in p.op or "x4" in p.op) and x.is_valu() and (p.meta.get("data", set()) & x.defs):
                req = max(req, 2)
            if p.kind == "ds_write" and ("b128" in p.op or "b96" in p.op) and x.is_valu() and (p.uses & x.defs):
                req = max(req, 1)
            if p.kind == "salu" and "m0" in p.defs and x.kind == "dma": req = max(req, 1)
            if p.kind == "salu" and "exec" in p.defs and (x.meta.get("dpp") or x.meta.get("permlane")): req = max(req, 2)
            if req - dist > need_ws: need_ws = req - dist; why = p
        while need_ws > 0:
            n = min(need_ws, 16)
            nop = Ins(f"s_nop {n-1}", auto=True)
            out.append(nop); hist.append((nop, pos)); pos += n; need_ws -= n; nins += 1
            if verbose: print("nop", n, "before", x.text, "because", why.text)
        out.append(x)
        hist.append((x, pos))
        pos += x.meta["n"] if x.kind == "nop" else 1
        if len(hist) > 64: hist = hist[-40:]
    return out, nins

def fix_align(ins):
    out = []; off = 0
    for x in ins:
        if x.kind == "directive" and x.text.startswith(".p2align"):
            al = 1 << int(x.text.split()[1]); off = (off + al - 1) // al * al
        if x.kind == "pseudo" and x.op == "align8" and off % 8:
            done = False
            for k in range(len(out) - 1, max(-1, len(out) - 40), -1):
                y = out[k]
                if y.kind in ("label", "directive"): break
                if y.kind == "pseudo" and y.op == "align8": break
                if y.is_valu() and y.size() == 4 and not y.meta.get("permlane") and not y.meta.get("readlane") and not y.op.startswith("v_accvgpr"):
                    t = y.text.split(None, 1)
                    out[k] = Ins(t[0].replace("_e32", "") + "_e64 " + t[1], **{kk: vv for kk, vv in y.meta.items() if kk != "mods"})
                    done = True; break
            if not done: out.append(Ins("s_nop 0", auto=True))
            off += 4
        out.append(x); off += x.size()
    return out, off

def render(ins):
    L = []
    for x in ins:
        if x.kind == "pseudo": continue
        L.append(x.text if x.kind in ("label", "directive") else "  " + x.text)
    return "\n".join(L) + "\n"

def finalize(prog_ins, verbose=False):
    a_ = insert_waits(prog_ins)
    b_, nn = fix_hazards(a_, verbose)
    c_, size = fix_align(b_)
    d_, nn2 = fix_hazards(c_)
    assert nn2 == 0
    return c_, dict(nops=nn, size=size, n=sum(1 for x in c_ if x.is_real()))
```

```python
import sys, struct, math
from asmlib import *

KNAME = "standalone__modern_conv_block_slak__vision_kernel"
NWG = 224
H = W = 224; C = 192; HID = 768
XBYTES = H * W * C * 2
WBYTES = C * HID * 2

KAPPA = 2.0 * math.sqrt(2.0 / math.pi) * math.log2(math.e)
BETA = KAPPA * 0.044715
SG = BETA ** (1.0 / 3.0)
APRIME = KAPPA / SG
def f2u(x): return struct.unpack("<I", struct.pack("<f", x))[0]
def hx(x): return "0x%08x" % (x & 0xffffffff)
def fl(x): return hx(f2u(x))

LDS_TOTAL = 163840
PLANE = 36864; ROWP = 2304
LN_T = 12288
WRING = 110592; WR_W = 12288
TBL = 159744
STAB = TBL; BTAB = TBL + 3072; MISC = TBL + 3072 + 768
EXSLOT = 16384

WS_PAGE = 4096
WS_BIAS = 3072
WS_CNT = 3968
WS_DBG = 1 << 20
NREP = 8

S_X, S_DW, S_W1, S_W2, S_G, S_B, S_OUT, S_DBG, S_WS = 4, 6, 8, 10, 12, 14, 16, 18, 20
SRD_X, SRD_W1, SRD_W2, SRD_OUT, SRD_DW = 24, 28, 32, 36, 40
S_W = 44; S_R0 = 45; S_C0 = 46; S_T0 = 47; S_T1 = 48; S_T2 = 49
S_NEGA = 50
S_HIM = 52
S_128 = 53; S_256 = 54
S_SOFF = 55; S_WRB = 56
S_T3 = 57; S_EX = 58
S_REP = 60
S_T4 = 61; S_T5 = 62
S_MSK = 64
S_TM = 66
S_STAMP = 70

class Gen:
    def __init__(self, stage=99, timers=False):
        self.p = Prog(); self.stage = stage; self.timers = timers; self.nstamp = 0

    def e(self, text, **m): self.p(text, **m)
    def add(self, x): self.p.add(x)

    def stamp(self, name):
        if not self.timers: return
        k = self.nstamp; self.nstamp += 1
        self.stamp_names = getattr(self, "stamp_names", []) + [name]
        self.e(f"s_memtime s[{S_STAMP}:{S_STAMP+1}]")
        self.add(wait_lds_all())
        self.e(f"s_mov_b32 s{72 + k}, s{S_STAMP}")
        assert 72 + k < 100

    def flush_stamps(self):
        if not self.timers: return
        e = self.e
        e(f"s_lshl_b32 s{S_T4}, s2, 2")
        e(f"s_add_u32 s{S_T4}, s{S_T4}, s{S_W}")
        e(f"s_lshl_b32 s{S_T4}, s{S_T4}, 7")
        e(f"s_add_u32 s{S_T4}, s{S_T4}, {WS_DBG - 262144}")
        e(f"v_mov_b32 v1, s{S_T4}")
        for k in range(self.nstamp):
            e(f"v_mov_b32 v0, s{72 + k}")
            e(f"global_store_dword v1, v0, s[{S_WS}:{S_WS+1}] offset:{4*k}")
            e("s_nop 1")
        self.add(wait_vm_all())

    def prologue(self):
        e = self.e
        e(f"s_cmp_ge_u32 s2, {NWG}")
        e("s_cbranch_scc1 L_end")
        e(f"s_load_dwordx4 s[{S_X}:{S_X+3}], s[0:1], 0")
        e(f"s_load_dwordx4 s[{S_W1}:{S_W1+3}], s[0:1], 16")
        e(f"s_load_dwordx4 s[{S_G}:{S_G+3}], s[0:1], 32")
        e(f"s_load_dwordx4 s[{S_OUT}:{S_OUT+3}], s[0:1], 48")
        e(f"s_load_dwordx2 s[{S_WS}:{S_WS+1}], s[0:1], 64")
        e("v_lshrrev_b32 v1, 6, v0")
        e("v_and_b32 v0, 63, v0")
        e(f"v_readfirstlane_b32 s{S_W}, v1")
        e(f"s_and_b32 s{S_T0}, s2, 7")
        e(f"s_mul_i32 s{S_T0}, s{S_T0}, 28")
        e(f"s_lshr_b32 s{S_T1}, s2, 3")
        e(f"s_add_u32 s{S_T0}, s{S_T0}, s{S_T1}")
        e(f"s_mul_i32 s{S_T1}, s{S_T0}, 4682")
        e(f"s_lshr_b32 s{S_T1}, s{S_T1}, 16")
        e(f"s_mul_i32 s{S_R0}, s{S_T1}, 14")
        e(f"s_sub_u32 s{S_T0}, s{S_T0}, s{S_R0}")
        e(f"s_lshl_b32 s{S_C0}, s{S_T0}, 4")
        e(f"s_mov_b32 s{S_NEGA}, {fl(-APRIME)}")
        e(f"s_mov_b32 s{S_NEGA+1}, {fl(-APRIME)}")
        e(f"s_mov_b32 s{S_HIM}, 0xffff0000")
        e(f"s_movk_i32 s{S_128}, 128")
        e(f"s_movk_i32 s{S_256}, 256")
        e(f"s_mul_i32 s{S_WRB}, s{S_W}, {WR_W}")
        e(f"s_add_u32 s{S_WRB}, s{S_WRB}, {WRING}")
        e(f"s_and_b32 s{S_REP}, s2, {NREP-1}")
        e(f"s_lshl_b32 s{S_REP}, s{S_REP}, 12")
        self.add(wait_lds_all())
        for srd, ptr, n in ((SRD_X, S_X, XBYTES), (SRD_W1, S_W1, WBYTES), (SRD_W2, S_W2, WBYTES), (SRD_OUT, S_OUT, XBYTES), (SRD_DW, S_DW, 9 * C * 2)):
            e(f"s_mov_b32 s{srd}, s{ptr}")
            e(f"s_and_b32 s{srd+1}, s{ptr+1}, 0xffff")
            e(f"s_mov_b32 s{srd+2}, {n}")
            e(f"s_mov_b32 s{srd+3}, 0x00020000")

    def phase0(self):
        e = self.e; add = self.add
        LANE = 0
        GA01, GA2, GA2L, TA1, TA2, MASK, MASKB, TMP = 1, 5, 9, 13, 14, 15, 19, 23
        AF = lambda st, f: 24 + 20 * st + 4 * f
        DC = lambda i, b: 64 + 48 * i + 4 * b
        GB = lambda st, k: 48 * st + 4 * k
        e(f"s_cmp_ge_u32 s2, {NREP}")
        e("s_cbranch_scc1 L_nozero")
        e(f"s_lshl_b32 s{S_T0}, s{S_W}, 10")
        e(f"s_add_u32 s{S_T0}, s{S_T0}, s{S_REP}")
        e(f"v_lshl_add_u32 v64, v{LANE}, 4, s{S_T0}")
        for k in range(4): e(f"v_mov_b32 v{68+k}, 0")
        e(f"global_store_dwordx4 v64, v[68:71], s[{S_WS}:{S_WS+1}] sc0 sc1", maybe=True)
        e("L_nozero:", nocheck=True)
        e(f"s_lshl_b32 s{S_T0}, s{S_W}, 10")
        e(f"v_lshl_add_u32 v72, v{LANE}, 4, s{S_T0}")
        e(f"s_add_u32 m0, s{S_T0}, {TBL}")
        e(f"buffer_load_dwordx4 v72, s[{SRD_DW}:{SRD_DW+3}], 0 offen lds", token="dw")
        XA = 80
        e(f"s_lshl_b32 s{S_T0}, s{S_W}, 3")
        e(f"v_lshrrev_b32 v73, 3, v{LANE}")
        e(f"v_add_u32 v73, s{S_T0}, v73")
        e(f"v_and_b32 v74, 7, v{LANE}")
        e("v_lshrrev_b32 v75, 1, v74")
        e("v_and_b32 v74, 1, v74")
        e("v_lshlrev_b32 v74, 4, v74")
        e(f"s_sub_u32 s{S_T1}, s{S_R0}, 1")
        e(f"s_sub_u32 s{S_T2}, s{S_C0}, 1")
        e(f"s_movk_i32 s{S_T3}, 224")
        e(f"s_movk_i32 s{S_T4}, 384")
        e(f"s_lshl_b32 s{S_T5}, s{S_W}, 10")
        e("v_mov_b32 v79, 0x80000000")
        for i in range(9):
            A = XA + i
            e(f"v_add_u32 v76, {32*i}, v73")
            e("v_mul_u32_u24 v77, 3641, v76")
            e("v_lshrrev_b32 v77, 16, v77")
            e("v_mul_u32_u24 v78, 18, v77")
            e("v_sub_u32 v76, v76, v78")
            e("v_bfe_u32 v78, v76, 1, 2")
            e("v_xor_b32 v78, v78, v75")
            e("v_lshl_add_u32 v78, v78, 5, v74")
            e(f"v_add_u32 v77, s{S_T1}, v77")
            e(f"v_add_u32 v76, s{S_T2}, v76")
            e(f"v_mad_u32_u24 v{A}, v77, s{S_T3}, v76")
            e(f"v_mad_u32_u24 v{A}, v{A}, s{S_T4}, v78")
            e(f"v_cmp_gt_u32 vcc, s{S_T3}, v76")
            e(f"v_cndmask_b32 v{A}, v79, v{A}, vcc")
            e(f"v_cmp_gt_u32 vcc, s{S_T3}, v77")
            e(f"v_cndmask_b32 v{A}, v79, v{A}, vcc")
            e(f"s_add_u32 m0, s{S_T5}, {i*4096}")
            e(f"buffer_load_dwordx4 v{A}, s[{SRD_X}:{SRD_X+3}], 0 offen lds", token="x0")
        self.stamp("x0iss")
        for pl, so in ((1, S_128), (2, S_256)):
            for i in range(9):
                e(f"s_add_u32 m0, s{S_T5}, {pl*PLANE + i*4096}")
                e(f"buffer_load_dwordx4 v{XA+i}, s[{SRD_X}:{SRD_X+3}], s{so} offen lds", token=f"x{pl}")
        self.stamp("x12iss")
        self.w_voffsets_w1(144)
        self.w1_dma(0, 144)
        self.stamp("w1iss")
        e(f"s_lshl_b32 s{S_T0}, s{S_W}, 2")
        e(f"s_min_u32 s{S_T0}, s{S_T0}, 10")
        e(f"s_mul_i32 s{S_T1}, s{S_T0}, {ROWP}")
        e(f"v_and_b32 v64, 15, v{LANE}")
        e(f"v_lshrrev_b32 v65, 4, v{LANE}")
        e("v_lshrrev_b32 v66, 1, v65")
        e("v_and_b32 v67, 1, v65")
        e("v_lshlrev_b32 v68, 4, v67")
        e(f"v_add_u32 v68, s{S_T1}, v68")
        e("v_add_u32 v69, v64, v66")
        e("v_lshl_add_u32 v70, v69, 7, v68")
        e("v_bfe_u32 v71, v69, 1, 2")
        for cu in range(4):
            e(f"v_xor_b32 v72, {cu}, v71")
            e(f"v_lshl_add_u32 v{GA01+cu}, v72, 5, v70")
        e("v_add_u32 v69, 2, v64")
        e("v_lshl_add_u32 v70, v69, 7, v68")
        e("v_bfe_u32 v71, v69, 1, 2")
        e(f"v_mul_u32_u24 v73, {ROWP}, v66")
        for cu in range(4):
            e(f"v_xor_b32 v72, {cu}, v71")
            e(f"v_lshl_add_u32 v{GA2L+cu}, v72, 5, v70")
            e(f"v_add_u32 v{GA2+cu}, v{GA2L+cu}, v73")
        e("v_lshrrev_b32 v69, 1, v64")
        e("v_lshlrev_b32 v69, 2, v69")
        e(f"v_add_u32 v69, {TBL}, v69")
        e("v_mul_u32_u24 v70, 384, v66")
        e(f"v_add_u32 v{TA1}, v69, v70")
        e("v_mul_u32_u24 v70, 1152, v66")
        e(f"v_add3_u32 v{TA2}, v69, v70, s{S_256}")
        e(f"v_add_u32 v{TA2}, 512, v{TA2}")
        e("v_lshrrev_b32 v69, 3, v64")
        e("v_and_b32 v70, 1, v64")
        e("v_mov_b32 v71, 0xffff")
        e(f"v_mov_b32 v72, s{S_HIM}")
        e("v_cmp_eq_u32 vcc, 1, v70")
        e("v_cndmask_b32 v71, v71, v72, vcc")
        e("v_cmp_eq_u32 vcc, v69, v67")
        e("v_cndmask_b32 v71, 0, v71, vcc")
        e("v_bfe_u32 v69, v64, 1, 2")
        for j in range(4):
            e(f"v_cmp_eq_u32 vcc, {j}, v69")
            e(f"v_cndmask_b32 v{MASK+j}, 0, v71, vcc")
        e("v_cmp_eq_u32 vcc, 0, v66")
        for j in range(4):
            e(f"v_cndmask_b32 v{MASKB+j}, 0, v{MASK+j}, vcc")
        self.stamp("addr")
        add(wait_vm_token("dw"))
        e("s_barrier")
        e(f"s_cmp_ge_u32 s2, {NREP}")
        e("s_cbranch_scc1 L_noflag")
        e(f"s_cmp_lg_u32 s{S_W}, 0")
        e("s_cbranch_scc1 L_noflag")
        e(f"v_cmp_eq_u32 vcc, 0, v{LANE}")
        e(f"s_and_saveexec_b64 s[{S_EX}:{S_EX+1}], vcc")
        e("v_mov_b32 v64, 0")
        e("v_mov_b32 v65, 1")
        e(f"global_atomic_add v64, v65, s[{S_DBG}:{S_DBG+1}]", maybe=True)
        e(f"s_mov_b64 exec, s[{S_EX}:{S_EX+1}]")
        e("L_noflag:", nocheck=True)

        def a_reads(b):
            st = b & 1
            L = []
            for dy in range(3): L.append(I(f"ds_read_b32 v{AF(st,dy)}, v{TA1} offset:{dy*1152 + b*32}"))
            L.append(I(f"ds_read_b32 v{AF(st,3)}, v{TA2} offset:{b*32}"))
            L.append(I(f"ds_read_b32 v{AF(st,4)}, v{TA1} offset:{3072 + b*32}"))
            return L
        def a_build(b):
            st = b & 1
            L = []
            for f in range(5):
                M = MASKB if f == 4 else MASK
                for j in (3, 2, 1, 0):
                    L.append(I(f"v_and_b32 v{AF(st,f)+j}, v{AF(st,f)}, v{M+j}"))
            return L
        def g_reads(b):
            st = b & 1; cu = b & 3
            L = []
            order = [(0,0),(1,0),(0,1),(1,1),(0,2),(1,2),(0,3),(1,3),(0,4),(1,4),(0,5),(1,5)]
            for typ, r in order:
                if typ == 0: L.append(I(f"ds_read_b128 a[{GB(st,r)}:{GB(st,r)+3}], v{GA01+cu} offset:{r*ROWP}"))
                else:
                    reg = GA2L + cu if r == 5 else GA2 + cu
                    L.append(I(f"ds_read_b128 a[{GB(st,6+r)}:{GB(st,6+r)+3}], v{reg} offset:{r*ROWP}"))
            return L
        def mfmas(b):
            st = b & 1
            L = []
            seq = []
            for step in range(5):
                for i in range(4): seq.append((step, i))
            for step, i in seq:
                f, g = [(0, i), (3, 6+i), (1, i+1), (2, i+2), (4, 6+i+2)][step]
                d = DC(i, b)
                c = "0" if step == 0 else f"v[{d}:{d+3}]"
                L.append(I(f"v_mfma_f32_16x16x32_bf16 v[{d}:{d+3}], v[{AF(st,f)}:{AF(st,f)+3}], a[{GB(st,g)}:{GB(st,g)+3}], {c}"))
            return L
        def plane_step():
            return [I(f"v_add_u32 v{r}, {PLANE}, v{r}") for r in range(GA01, GA01 + 12)]

        add(a_reads(0)); add(a_build(0)); add(a_reads(1))
        self.stamp("dwready")
        add(wait_vm_token("x0"))
        e("s_barrier")
        self.stamp("x0")
        add(g_reads(0))
        for b in range(12):
            M = mfmas(b)
            fill = []
            if b + 1 < 12:
                if (b + 1) % 4 == 0:
                    fill += plane_step()
                    fill += [wait_vm_token(f"x{(b+1)//4}"), I("s_barrier")]
                    if self.timers: pass
                g = g_reads(b + 1)
                ab = a_build(b + 1)
                mix = []
                for k in range(12):
                    mix.append(g[k]); mix += ab[k*20//12:(k+1)*20//12]
                fill += mix
            out = []; k = 0; n = len(fill)
            for j, m in enumerate(M):
                out.append(m)
                upto = (j + 1) * n // 18 if j < 18 else n
                out += fill[k:min(upto, n)]; k = max(k, min(upto, n))
            add(out)
            if b + 2 < 12: add(a_reads(b + 2))
        self.stamp("conv")
        add(wait_lds_all())
        e("s_barrier")

        e("v_mov_b32 v11, 0")
        e(f"global_load_dword v12, v11, s[{S_DBG}:{S_DBG+1}] sc0 sc1")
        self.bias_loads(1)
        SP = lambda i: 24 + 2 * i
        S1 = lambda i: 32 + i
        Wv, Yv, Zv = 36, 37, 38
        MM = lambda i: 40 + 2 * i
        def pairs(i): return [DC(i, 0) + 2 * k for k in range(24)]
        def reduce_bcast(scale_code):
            e(f"v_permlane32_swap_b32 v{S1(0)}, v{S1(1)}")
            e(f"v_permlane32_swap_b32 v{S1(2)}, v{S1(3)}")
            e(f"v_add_f32 v{S1(0)}, v{S1(0)}, v{S1(1)}")
            e(f"v_add_f32 v{S1(2)}, v{S1(2)}, v{S1(3)}")
            e(f"v_permlane16_swap_b32 v{S1(0)}, v{S1(2)}")
            e(f"v_add_f32 v{Wv}, v{S1(0)}, v{S1(2)}")
            scale_code(Wv)
            e(f"v_mov_b32 v{Yv}, v{Wv}")
            e(f"v_permlane16_swap_b32 v{Wv}, v{Yv}")
            e(f"v_mov_b32 v{MM(0)}, v{Wv}")
            e(f"v_mov_b32 v{MM(2)}, v{Yv}")
            e(f"v_permlane32_swap_b32 v{MM(0)}, v{Wv}")
            e(f"v_permlane32_swap_b32 v{MM(2)}, v{Yv}")
            e(f"v_mov_b32 v{MM(1)}, v{Wv}")
            e(f"v_mov_b32 v{MM(3)}, v{Yv}")
        add(align8())
        for i in range(4):
            P_ = pairs(i)
            e(f"v_pk_add_f32 v[{SP(i)}:{SP(i)+1}], v[{P_[0]}:{P_[0]+1}], v[{P_[1]}:{P_[1]+1}]")
        for k in range(2, 24):
            for i in range(4):
                P_ = pairs(i)
                e(f"v_pk_add_f32 v[{SP(i)}:{SP(i)+1}], v[{SP(i)}:{SP(i)+1}], v[{P_[k]}:{P_[k]+1}]")
        for i in range(4): e(f"v_add_f32 v{S1(i)}, v{SP(i)}, v{SP(i)+1}")
        reduce_bcast(lambda r: e(f"v_mul_f32 v{r}, {fl(1.0/192)}, v{r}"))
        add(align8())
        for k in range(24):
            for i in range(4):
                P_ = pairs(i)
                e(f"v_pk_add_f32 v[{P_[k]}:{P_[k]+1}], v[{P_[k]}:{P_[k]+1}], v[{MM(i)}:{MM(i)+1}] op_sel_hi:[1,0] neg_lo:[0,1] neg_hi:[0,1]")
        for i in range(4):
            P_ = pairs(i)
            e(f"v_pk_mul_f32 v[{SP(i)}:{SP(i)+1}], v[{P_[0]}:{P_[0]+1}], v[{P_[0]}:{P_[0]+1}]")
        for k in range(1, 24):
            for i in range(4):
                P_ = pairs(i)
                e(f"v_pk_fma_f32 v[{SP(i)}:{SP(i)+1}], v[{P_[k]}:{P_[k]+1}], v[{P_[k]}:{P_[k]+1}], v[{SP(i)}:{SP(i)+1}]")
        for i in range(4): e(f"v_add_f32 v{S1(i)}, v{SP(i)}, v{SP(i)+1}")
        def rs(r):
            e(f"v_mov_b32 v{Zv}, {fl(1e-5)}")
            e(f"v_fmac_f32 v{Zv}, {fl(1.0/192)}, v{r}")
            e(f"v_rsq_f32 v{r}, v{Zv}")
            e(f"v_mul_f32 v{r}, {fl(SG)}, v{r}")
        reduce_bcast(rs)
        LA = 13
        e(f"s_lshl_b32 s{S_T0}, s{S_W}, 2")
        e(f"s_min_u32 s{S_T0}, s{S_T0}, 10")
        e(f"s_mul_i32 s{S_T0}, s{S_T0}, {LN_T//2}")
        e(f"v_and_b32 v14, 15, v{LANE}")
        e("v_lshlrev_b32 v14, 4, v14")
        e(f"v_lshrrev_b32 v15, 5, v{LANE}")
        e("v_lshl_add_u32 v14, v15, 9, v14")
        e(f"v_bfe_u32 v15, v{LANE}, 4, 1")
        e("v_lshl_add_u32 v14, v15, 3, v14")
        e(f"v_add_u32 v{LA}, s{S_T0}, v14")
        add(align8())
        for b in range(12):
            for i in range(4):
                d = DC(i, b)
                for k in (0, 2):
                    e(f"v_pk_mul_f32 v[{d+k}:{d+k+1}], v[{d+k}:{d+k+1}], v[{MM(i)}:{MM(i)+1}] op_sel_hi:[1,0]")
            for i in range(4):
                d = DC(i, b)
                e(f"v_cvt_pk_bf16_f32 v{d}, v{d}, v{d+1}")
                e(f"v_cvt_pk_bf16_f32 v{d+1}, v{d+2}, v{d+3}")
            for i in range(4):
                d = DC(i, b)
                e(f"ds_write_b64 v{LA}, v[{d}:{d+1}] offset:{(i>>1)*LN_T + (i&1)*256 + b*1024}")
        add(wait_lds_all())
        e("s_barrier")
        self.stamp("ln")

    P1_BLO, P1_BHI, P1_ATR, P1_WVO, P1_ATOM = 1, 2, 3, 4, 5
    P1_D = (8, 24, 40); P1_T = (56, 72); P1_ACC = 88; P1_HT = 104
    NA_UNITS = 28
    @staticmethod
    def hreg(u):
        return R("a", 8 * u, 8) if u < Gen.NA_UNITS else R("v", 144 + 8 * (u - Gen.NA_UNITS), 8)
    @staticmethod
    def a1(jj):
        return R("a", 240 + 4 * jj, 4) if jj < 4 else R("v", 112 + 4 * (jj - 4), 4)

    def p1_setup(self):
        e = self.e
        e(f"v_lshlrev_b32 v{self.P1_BLO}, 4, v0")
        e(f"v_add_u32 v{self.P1_BHI}, {3*LN_T}, v{self.P1_BLO}")
        e("v_lshrrev_b32 v6, 5, v0")
        e("v_lshlrev_b32 v6, 9, v6")
        e("v_bfe_u32 v7, v0, 2, 2")
        e("v_lshl_add_u32 v6, v7, 6, v6")
        e("v_bfe_u32 v7, v0, 4, 1")
        e("v_lshl_add_u32 v6, v7, 5, v6")
        e("v_and_b32 v7, 3, v0")
        e("v_lshl_add_u32 v6, v7, 3, v6")
        e(f"v_add_u32 v{self.P1_ATR}, s{S_WRB}, v6")
        self.w_voffsets_w1(6)
        e(f"v_mov_b32 v{self.P1_WVO}, v6")
        e("v_bfe_u32 v6, v0, 1, 3")
        e("v_bfe_u32 v7, v0, 4, 1")
        e("v_lshl_add_u32 v6, v7, 3, v6")
        e("v_lshrrev_b32 v7, 2, v6")
        e("v_and_b32 v6, 3, v6")
        e("v_lshl_add_u32 v6, v7, 3, v6")
        e("v_lshrrev_b32 v7, 5, v0")
        e("v_lshl_add_u32 v6, v7, 2, v6")
        e(f"s_mul_i32 s{S_T0}, s{S_W}, 768")
        e(f"s_add_u32 s{S_T0}, s{S_T0}, s{S_REP}")
        e(f"v_lshl_add_u32 v{self.P1_ATOM}, v6, 2, s{S_T0}")
        e(f"s_mov_b32 s{S_MSK}, 0xcccccccc")
        e(f"s_mov_b32 s{S_MSK+1}, 0xcccccccc")

    def a1_reads(self, m):
        L = []
        for jj in range(12):
            r = self.a1(jj)
            for qq in range(2):
                L.append(I(f"ds_read_b64_tr_b16 {r[2*qq:2*qq+2]}, v{self.P1_ATR} offset:{jj*1024 + qq*256}"))
        return L
    def b_read(self, g):
        u, jj = divmod(g, 12); t = u % 7
        base, off = (self.P1_BLO, t * LN_T) if t < 3 else (self.P1_BHI, (t - 3) * LN_T)
        b = 224 + 4 * (g % 4)
        return I(f"ds_read_b128 a[{b}:{b+3}], v{base} offset:{off + jj*1024}")
    def sq_reduce(self, m):
        A_ = self.P1_ACC
        L = []
        for r in range(8): L.append(I(f"v_permlane16_swap_b32 v{A_+r}, v{A_+r+8}"))
        for r in range(8): L.append(I(f"v_add_f32 v{A_+r}, v{A_+r}, v{A_+r+8}"))
        for r in range(4): L.append(I(f"v_add_f32_dpp v{A_+8+r}, v{A_+r}, v{A_+r} row_ror:8 row_mask:0xf bank_mask:0x3"))
        for r in range(4): L.append(I(f"v_add_f32_dpp v{A_+8+r}, v{A_+r+4}, v{A_+r+4} row_ror:8 row_mask:0xf bank_mask:0xc"))
        for r in range(2): L.append(I(f"v_add_f32_dpp v{A_+r}, v{A_+8+r}, v{A_+8+r} row_shl:4 row_mask:0xf bank_mask:0x5"))
        for r in range(2): L.append(I(f"v_add_f32_dpp v{A_+r}, v{A_+10+r}, v{A_+10+r} row_shr:4 row_mask:0xf bank_mask:0xa"))
        for r in range(2): L.append(I(f"v_add_f32_dpp v{A_+2+r}, v{A_+r}, v{A_+r} quad_perm:[2,3,0,1] row_mask:0xf bank_mask:0xf"))
        L.append(I(f"v_cndmask_b32 v{A_+4}, v{A_+2}, v{A_+3}, s[{S_MSK}:{S_MSK+1}]"))
        L.append(I(f"v_add_f32_dpp v6, v{A_+4}, v{A_+4} quad_perm:[1,0,3,2] row_mask:0xf bank_mask:0xf"))
        L.append([I(f"s_mov_b32 exec_lo, 0x55555555"), I(f"s_mov_b32 exec_hi, 0x55555555"),
                  I(f"global_atomic_add_f32 v{self.P1_ATOM}, v6, s[{S_WS}:{S_WS+1}] offset:{m*128}", token="atom"),
                  I("s_mov_b64 exec, -1")])
        return L

    def phase1(self, extra0=None):
        e = self.e; add = self.add
        D, T, ACC, HT = self.P1_D, self.P1_T, self.P1_ACC, self.P1_HT
        NU = 42
        add(wait_vm_token("w1_0"))
        add(self.a1_reads(0))
        for g in range(4): add(self.b_read(g))
        dma_q = []
        for n in range(NU + 2):
            tr = []
            if 1 <= n <= NU: tr_e = [I(f"v_exp_f32 v{T[(n-1)%2]+i}, v{T[(n-1)%2]+i}") for i in range(16)]
            else: tr_e = []
            if 2 <= n <= NU + 1: tr_r = [I(f"v_rcp_f32 v{T[n%2]+i}, v{T[n%2]+i}") for i in range(16)]
            else: tr_r = []
            for i in range(16):
                if tr_e: tr.append(tr_e[i])
                if tr_r: tr.append(tr_r[i])
            tail = []
            u3 = n - 3
            if 0 <= u3 < self.NA_UNITS:
                h = self.hreg(u3)
                tail += [I(f"v_accvgpr_write_b32 {h[i]}, v{HT+i}") for i in range(8)]
            body = list(tr)
            if n >= 9 and (n - 2) % 7 == 0 and n <= NU + 1:
                m_done = (n - 2) // 7 - 1
                red = self.sq_reduce(m_done)
                mix = []; k = 0
                for i, x in enumerate(body):
                    mix.append(x)
                    upto = (i + 1) * len(red) // len(body)
                    mix += red[k:upto]; k = upto
                body = mix + red[k:]
            if n == 0 and extra0: body = body + extra0
            if n % 7 == 1 and n // 7 + 1 < 6:
                dma_q = self.w1_dma_list(n // 7 + 1, self.P1_WVO)
            if n == 36: dma_q = self.w2_dma_list(0)
            dm = []
            if n % 7 >= 1 or n >= 36:
                for _ in range(3):
                    if dma_q: dm.append(dma_q.pop(0))
            if n < NU:
                Dn = D[n % 3]
                ntr = len(body)
                if tail or not tr:
                    gaps = [(ntr * (j + 1)) // 11 - (ntr * j) // 11 for j in range(11)] + [0]
                else:
                    keep = min(5, ntr)
                    gaps = [((ntr - keep) * (j + 1)) // 11 - ((ntr - keep) * j) // 11 for j in range(11)] + [keep]
                k = 0
                for jj in range(12):
                    g = 12 * n + jj
                    b = 224 + 4 * (g % 4)
                    if jj % 2 == 0:
                        b2 = 224 + 4 * ((g + 1) % 4)
                        add(need(f"a[{b}:{b+3}]", f"a[{b2}:{b2+3}]"))
                    c = "0" if jj == 0 else f"v[{Dn}:{Dn+15}]"
                    e(f"v_mfma_f32_32x32x16_bf16 v[{Dn}:{Dn+15}], {self.a1(jj)}, a[{b}:{b+3}], {c}")
                    if g + 4 < 12 * NU: add(self.b_read(g + 4))
                    add(body[k:k + gaps[jj]]); k += gaps[jj]
                    if dm and jj in (2, 5, 8): add(dm.pop(0))
                add(body[k:])
                if n % 7 == 6 and n // 7 + 1 < 6:
                    add(wait_vm_token(f"w1_{n//7+1}"))
                    add(self.a1_reads(n // 7 + 1))
                add(tail)
            else:
                add(body); add(tail)
                for d_ in dm: add(d_)
            add(align8())
            if n >= 2:
                u = n - 2; Tb = T[n % 2]; Dc = D[u % 3]
                for i in range(0, 16, 2): e(f"v_pk_mul_f32 v[{Tb+i}:{Tb+i+1}], v[{Tb+i}:{Tb+i+1}], v[{Dc+i}:{Dc+i+1}]")
            if 1 <= n <= NU:
                Ta = T[(n - 1) % 2]
                for i in range(0, 16, 2): e(f"v_pk_add_f32 v[{Ta+i}:{Ta+i+1}], v[{Ta+i}:{Ta+i+1}], 1.0 op_sel_hi:[1,0]")
            if n >= 2:
                u = n - 2; Tb = T[n % 2]
                for i in range(0, 16, 2):
                    if u % 7 == 0: e(f"v_pk_mul_f32 v[{ACC+i}:{ACC+i+1}], v[{Tb+i}:{Tb+i+1}], v[{Tb+i}:{Tb+i+1}]")
                    else: e(f"v_pk_fma_f32 v[{ACC+i}:{ACC+i+1}], v[{Tb+i}:{Tb+i+1}], v[{Tb+i}:{Tb+i+1}], v[{ACC+i}:{ACC+i+1}]")
                h = self.hreg(u)
                for i in range(8):
                    dst = f"v{HT+i}" if u < self.NA_UNITS else str(h[i])
                    e(f"v_cvt_pk_bf16_f32 {dst}, v{Tb+2*i}, v{Tb+2*i+1}")
            if n < NU:
                Tz = T[n % 2]; Dn = D[n % 3]
                for i in range(0, 16, 2): e(f"v_pk_fma_f32 v[{Tz+i}:{Tz+i+1}], v[{Dn+i}:{Dn+i+1}], v[{Dn+i}:{Dn+i+1}], s[{S_NEGA}:{S_NEGA+1}] neg_lo:[1,0,0] neg_hi:[1,0,0]")
                for i in range(0, 16, 2): e(f"v_pk_mul_f32 v[{Tz+i}:{Tz+i+1}], v[{Tz+i}:{Tz+i+1}], v[{Dn+i}:{Dn+i+1}]")
        assert not dma_q
        add(self.sq_reduce(5))

    P2_EXW, P2_EXR, P2_XO, P2_ATR, P2_SB, P2_WVO = 1, 5, 6, 7, 8, 9
    P2_BIAS, P2_TMP, P2_S, P2_PART, P2_BA, P2_POOL = 10, 14, 18, 28, 46, 48
    P2_X = (26, 44)
    W2VO_EARLY = 7

    def w2_voffset(self, reg, t1):
        e = self.e
        e(f"v_lshrrev_b32 v{reg}, 2, v0")
        e(f"s_mul_i32 s{S_T0}, s{S_W}, 192")
        e(f"v_add_u32 v{reg}, s{S_T0}, v{reg}")
        e(f"v_mul_u32_u24 v{reg}, 384, v{reg}")
        e(f"v_and_b32 v{t1}, 3, v0")
        e(f"v_lshl_add_u32 v{reg}, v{t1}, 4, v{reg}")

    def w2_dma_list(self, c, reg=None):
        reg = self.W2VO_EARLY if reg is None else reg
        L = []
        for q in range(12):
            L.append([I(f"s_add_u32 m0, s{S_WRB}, {q*1024}"),
                      I(f"s_mov_b32 s{S_SOFF}, {q*6144 + 64*c}"),
                      I(f"buffer_load_dwordx4 v{reg}, s[{SRD_W2}:{SRD_W2+3}], s{S_SOFF} offen lds", token=f"w2_{c}")])
        return L

    def pool(self, c, kk): return self.P2_POOL + 4 * ((12 * c + kk) % 24)
    def a2_reads(self, c, kk):
        r = self.pool(c, kk)
        return [I(f"ds_read_b64_tr_b16 v[{r+2*qq}:{r+2*qq+1}], v{self.P2_ATR} offset:{kk*1024 + qq*512}", token=f"a2_{c}") for qq in range(2)]
    def s_reads(self, kk):
        S = self.P2_S
        return [I(f"ds_read_b128 v[{S+4*qq}:{S+4*qq+3}], v{self.P2_SB} offset:{(16*kk + 8*qq)*4}") for qq in range(2)]
    def a2_scale(self, c, kk):
        r = self.pool(c, kk); S = self.P2_S; T = self.P2_TMP
        L = []
        for jp in (0, 2):
            t = [(T, T+1), (T+2, T+3)]
            for d in range(2):
                L.append(I(f"v_lshlrev_b32 v{t[d][0]}, 16, v{r+jp+d}"))
                L.append(I(f"v_and_b32 v{t[d][1]}, s{S_HIM}, v{r+jp+d}"))
            for d in range(2):
                L.append(I(f"v_mul_f32 v{t[d][0]}, v{t[d][0]}, v{S+2*(jp+d)}"))
                L.append(I(f"v_mul_f32 v{t[d][1]}, v{t[d][1]}, v{S+2*(jp+d)+1}"))
            for d in range(2):
                L.append(I(f"v_cvt_pk_bf16_f32 v{r+jp+d}, v{t[d][0]}, v{t[d][1]}"))
        return L

    def wave_allreduce(self, r, t):
        e = self.e
        for k in (8, 4, 2, 1):
            e(f"v_add_f32_dpp v{r}, v{r}, v{r} row_ror:{k} row_mask:0xf bank_mask:0xf")
        e(f"v_mov_b32 v{t}, v{r}")
        e(f"v_permlane16_swap_b32 v{r}, v{t}")
        e(f"v_add_f32 v{r}, v{r}, v{t}")
        e(f"v_mov_b32 v{t}, v{r}")
        e(f"v_permlane32_swap_b32 v{r}, v{t}")
        e(f"v_add_f32 v{r}, v{r}, v{t}")

    def bias_loads(self, W):
        e = self.e
        e(f"s_min_u32 s{S_T0}, s2, 191")
        e(f"s_lshl_b32 s{S_T0}, s{S_T0}, 1")
        e(f"s_mul_i32 s{S_T1}, s{S_W}, 192")
        e(f"v_add_u32 v{W+6}, s{S_T1}, v0")
        e(f"v_mul_u32_u24 v{W+7}, 384, v{W+6}")
        e(f"v_add_u32 v{W+7}, s{S_T0}, v{W+7}")
        e(f"v_lshlrev_b32 v{W+6}, 1, v{W+6}")
        for j in range(3):
            e(f"global_load_ushort v{W+3+j}, v{W+6}, s[{S_B}:{S_B+1}] offset:{128*j}")
        for j in range(3):
            e(f"global_load_ushort v{W+j}, v{W+7}, s[{S_W2}:{S_W2+1}]")
            if j < 2: e(f"v_add_u32 v{W+7}, {64*384}, v{W+7}")
    def bias_finish(self, W):
        e = self.e
        for j in range(6): e(f"v_lshlrev_b32 v{W+j}, 16, v{W+j}")
        e(f"v_mul_f32 v{W}, v{W}, v{W+3}")
        e(f"v_fmac_f32 v{W}, v{W+1}, v{W+4}")
        e(f"v_fmac_f32 v{W}, v{W+2}, v{W+5}")
        self.wave_allreduce(W, W + 1)
        e(f"s_cmp_ge_u32 s2, 192")
        e("s_cbranch_scc1 L_nobias", nocheck=True)
        e(f"s_lshl_b32 s{S_T0}, s2, 2")
        e(f"s_add_u32 s{S_T0}, s{S_T0}, {WS_BIAS}")
        e(f"v_mov_b32 v{W+1}, s{S_T0}")
        e("s_mov_b64 exec, 1")
        e(f"global_atomic_add_f32 v{W+1}, v{W}, s[{S_WS}:{S_WS+1}]", maybe=True)
        e("s_mov_b64 exec, -1")
        e("L_nobias:", nocheck=True)

    def grn_barrier(self):
        e = self.e; add = self.add
        GL = 128
        e(f"s_mul_i32 s{S_T0}, s{S_W}, 192")
        e("v_mul_u32_u24 v8, 3, v0")
        e(f"v_add_u32 v8, s{S_T0}, v8")
        e("v_lshlrev_b32 v9, 1, v8")
        for k in range(3): e(f"global_load_ushort v{GL+k}, v9, s[{S_G}:{S_G+1}] offset:{2*k}")
        add(wait_vm_all())
        self.stamp("atomdone")
        e("s_barrier")
        e(f"s_cmp_lg_u32 s{S_W}, 0")
        e("s_cbranch_scc1 L_arrived", nocheck=True)
        e(f"s_add_u32 s{S_T0}, s{S_REP}, {WS_CNT}")
        e(f"v_mov_b32 v10, s{S_T0}")
        e("v_mov_b32 v11, 1")
        e("s_mov_b64 exec, 1")
        e(f"global_atomic_add v10, v11, s[{S_WS}:{S_WS+1}]", maybe=True)
        e("s_mov_b64 exec, -1")
        e("L_arrived:", nocheck=True)
        self.p2_setup()
        for kk in range(12): add(self.a2_reads(0, kk))
        add(wait_lds_all())
        for d_ in self.w2_dma_list(1, self.P2_WVO): add(d_)
        e(f"s_cmp_lg_u32 s{S_W}, 0")
        e("s_cbranch_scc1 L_polled", nocheck=True)
        add(cond_begin())
        e("v_lshlrev_b32 v16, 12, v0")
        e(f"v_add_u32 v16, {WS_CNT}, v16")
        e("s_mov_b64 exec, 0xff")
        e(f"s_mov_b32 s{S_T4}, 0")
        e("L_poll:", nocheck=True)
        e(f"global_load_dword v17, v16, s[{S_WS}:{S_WS+1}] sc0 sc1", maybe=True)
        e("s_waitcnt vmcnt(0)")
        e(f"v_cmp_gt_u32 vcc, {NWG//NREP}, v17")
        e("s_nop 1")
        e("s_and_b64 vcc, vcc, exec")
        e("s_cbranch_vccz L_pollok", nocheck=True)
        e("s_sleep 1")
        e(f"s_add_u32 s{S_T4}, s{S_T4}, 1")
        e(f"s_cmp_lt_u32 s{S_T4}, 0x40000")
        e("s_cbranch_scc1 L_poll", nocheck=True)
        e("L_pollok:", nocheck=True)
        e("s_mov_b64 exec, -1")
        add(cond_end())
        e("L_polled:", nocheck=True)
        e("s_barrier")
        self.stamp("barrier")
        e(f"s_mul_i32 s{S_T0}, s{S_W}, 768")
        e("v_mul_u32_u24 v16, 12, v0")
        e(f"v_add_u32 v16, s{S_T0}, v16")
        for r in range(NREP):
            e(f"global_load_dwordx3 v[{self._sumreg(r)}:{self._sumreg(r)+2}], v16, s[{S_WS}:{S_WS+1}] sc0 sc1")
            if r < NREP - 1: e(f"v_add_u32 v16, {WS_PAGE}, v16")
        e(f"s_mul_i32 s{S_T0}, s{S_W}, 48")
        e("v_min_u32 v17, 47, v0")
        e(f"v_add_u32 v17, s{S_T0}, v17")
        e("v_lshlrev_b32 v17, 2, v17")
        e(f"v_add_u32 v14, {WS_BIAS}, v17")
        e(f"global_load_dword v15, v14, s[{S_WS}:{S_WS+1}] sc0 sc1")
        R0_ = self._sumreg(0)
        for r in range(1, NREP):
            for k in range(3): e(f"v_add_f32 v{R0_+k}, v{R0_+k}, v{self._sumreg(r)+k}")
        e(f"v_mov_b32 v14, {fl(1e-6)}")
        e(f"s_mov_b32 s{S_T1}, {fl(1.0/(SG*SG))}")
        for k in range(3): e(f"v_fma_f32 v{R0_+k}, v{R0_+k}, s{S_T1}, v14")
        for k in range(3): e(f"v_sqrt_f32 v{R0_+k}, v{R0_+k}")
        e(f"v_add_u32 v17, {BTAB}, v17")
        e("ds_write_b32 v17, v15")
        e(f"v_add_f32 v14, v{R0_}, v{R0_+1}")
        e(f"v_add_f32 v14, v14, v{R0_+2}")
        self.wave_allreduce(14, 15)
        e(f"s_lshl_b32 s{S_T0}, s{S_W}, 2")
        e(f"s_add_u32 s{S_T0}, s{S_T0}, {MISC}")
        e(f"v_mov_b32 v15, s{S_T0}")
        e("ds_write_b32 v15, v14")
        add(wait_lds_all())
        e("s_barrier")
        e(f"v_mov_b32 v15, {MISC}")
        e("ds_read_b128 v[24:27], v15")
        e("v_add_f32 v24, v24, v25")
        e("v_add_f32 v26, v26, v27")
        e("v_add_f32 v24, v24, v26")
        e(f"v_mov_b32 v25, {fl(1e-6)}")
        e(f"v_fmac_f32 v25, {fl(1.0/768)}, v24")
        e("v_rcp_f32 v25, v25")
        e(f"v_mul_f32 v25, {fl(1.0/SG)}, v25")
        e(f"v_mov_b32 v26, {fl(1.0/SG)}")
        e(f"s_mul_i32 s{S_T0}, s{S_W}, 768")
        e(f"s_add_u32 s{S_T0}, s{S_T0}, {STAB}")
        e("v_mul_u32_u24 v16, 12, v0")
        e(f"v_add_u32 v16, s{S_T0}, v16")
        for k in range(3):
            e(f"v_lshlrev_b32 v{GL+k}, 16, v{GL+k}")
            e(f"v_mul_f32 v{GL+k}, v{GL+k}, v{R0_+k}")
            e(f"v_fma_f32 v{GL+k}, v{GL+k}, v25, v26")
            e(f"ds_write_b32 v16, v{GL+k} offset:{4*k}")
        add(wait_lds_all())
        self.stamp("svec")

    def _sumreg(self, r):
        return 96 + 4 * r

    def p2_setup(self):
        e = self.e
        EXW = self.P2_EXW
        e("v_and_b32 v14, 31, v0")
        e("v_and_b32 v15, 7, v14")
        e("v_bfe_u32 v16, v14, 4, 1")
        e("v_xor_b32 v15, v15, v16")
        e("v_lshrrev_b32 v16, 5, v0")
        e(f"s_lshl_b32 s{S_T0}, s{S_W}, 12")
        e(f"v_lshl_add_u32 v14, v14, 7, s{S_T0}")
        for q in range(4):
            e(f"v_add_u32 v17, {2*q}, v16")
            e("v_xor_b32 v17, v17, v15")
            e(f"v_lshl_add_u32 v{EXW+q}, v17, 4, v14")
        e(f"s_lshl_b32 s{S_T0}, s{S_W}, 3")
        e("v_lshrrev_b32 v14, 3, v0")
        e(f"v_add_u32 v14, s{S_T0}, v14")
        e("v_and_b32 v15, 7, v14")
        e("v_bfe_u32 v16, v14, 4, 1")
        e("v_xor_b32 v15, v15, v16")
        e("v_and_b32 v16, 7, v0")
        e("v_xor_b32 v15, v15, v16")
        e("v_lshlrev_b32 v15, 4, v15")
        e(f"v_lshl_add_u32 v{self.P2_EXR}, v14, 7, v15")
        e(f"v_lshlrev_b32 v{self.P2_BA}, 4, v16")
        e(f"v_add_u32 v{self.P2_BA}, {BTAB}, v{self.P2_BA}")
        e(f"s_lshr_b32 s{S_T0}, s{S_W}, 1")
        e(f"s_add_u32 s{S_T0}, s{S_T0}, s{S_R0}")
        e(f"s_mul_i32 s{S_T0}, s{S_T0}, 224")
        e(f"s_add_u32 s{S_T0}, s{S_T0}, s{S_C0}")
        e(f"s_and_b32 s{S_T1}, s{S_W}, 1")
        e(f"s_lshl_b32 s{S_T1}, s{S_T1}, 3")
        e(f"s_add_u32 s{S_T0}, s{S_T0}, s{S_T1}")
        e("v_lshrrev_b32 v14, 3, v0")
        e(f"v_add_u32 v14, s{S_T0}, v14")
        e("v_mul_u32_u24 v14, 384, v14")
        e(f"v_lshl_add_u32 v{self.P2_XO}, v16, 3, v14")
        e("v_lshrrev_b32 v14, 5, v0")
        e("v_lshlrev_b32 v15, 8, v14")
        e("v_bfe_u32 v16, v0, 2, 2")
        e("v_lshl_add_u32 v15, v16, 6, v15")
        e("v_bfe_u32 v16, v0, 4, 1")
        e("v_lshl_add_u32 v15, v16, 5, v15")
        e("v_and_b32 v16, 3, v0")
        e("v_lshl_add_u32 v15, v16, 3, v15")
        e(f"v_add_u32 v{self.P2_ATR}, s{S_WRB}, v15")
        e(f"s_mul_i32 s{S_T0}, s{S_W}, 768")
        e(f"s_add_u32 s{S_T0}, s{S_T0}, {STAB}")
        e(f"v_lshl_add_u32 v{self.P2_SB}, v14, 4, s{S_T0}")
        self.w2_voffset(self.P2_WVO, 14)

    def phase2(self):
        e = self.e; add = self.add
        EXW, EXR, XO, BA = self.P2_EXW, self.P2_EXR, self.P2_XO, self.P2_BA
        PART, BIAS = self.P2_PART, self.P2_BIAS
        D2 = (224, 240)
        NT = 42
        for kk in range(12):
            add(self.s_reads(kk)); add(self.a2_scale(0, kk))
        e(f"ds_read_b128 v[{BIAS}:{BIAS+3}], v{BA}")
        def xload(n):
            c, t = divmod(n, 7); xb = self.P2_X[n % 2]
            return [I(f"s_mov_b32 s{S_T2}, {t*172032 + c*64}"),
                    I(f"buffer_load_dwordx2 v[{xb}:{xb+1}], v{XO}, s[{SRD_X}:{SRD_X+3}], s{S_T2} offen")]
        def ex_writes(n):
            d = D2[n % 2]
            return [I(f"ds_write_b128 v{EXW+q}, a[{d+4*q}:{d+4*q+3}] offset:{(n%2)*EXSLOT}", token="xw") for q in range(4)]
        def ep_reads(n):
            return [I(f"ds_read_b128 v[{PART+4*s_}:{PART+4*s_+3}], v{EXR} offset:{(n%2)*EXSLOT + s_*4096}") for s_ in range(4)]
        def ep_valu(n):
            c, t = divmod(n, 7); xb = self.P2_X[n % 2]
            p0, p1, p2, p3 = (PART + 4*s_ for s_ in range(4))
            L = []
            for r in range(4): L.append(I(f"v_add_f32 v{p0+r}, v{p0+r}, v{p1+r}"))
            for r in range(4): L.append(I(f"v_add_f32 v{p2+r}, v{p2+r}, v{p3+r}"))
            L += [I(f"v_lshlrev_b32 v{p1}, 16, v{xb}"), I(f"v_and_b32 v{p1+1}, s{S_HIM}, v{xb}"),
                  I(f"v_lshlrev_b32 v{p1+2}, 16, v{xb+1}"), I(f"v_and_b32 v{p1+3}, s{S_HIM}, v{xb+1}")]
            for r in range(4): L.append(I(f"v_add_f32 v{p0+r}, v{p0+r}, v{p2+r}"))
            for r in range(4): L.append(I(f"v_add_f32 v{p0+r}, v{p0+r}, v{BIAS+r}"))
            for r in range(4): L.append(I(f"v_add_f32 v{p0+r}, v{p0+r}, v{p1+r}"))
            L.append(I(f"v_cvt_pk_bf16_f32 v{p2}, v{p0}, v{p0+1}"))
            L.append(I(f"v_cvt_pk_bf16_f32 v{p2+1}, v{p0+2}, v{p0+3}"))
            L.append([I(f"s_mov_b32 s{S_T3}, {t*172032 + c*64}"),
                      I(f"buffer_store_dwordx2 v[{p2}:{p2+1}], v{XO}, s[{SRD_OUT}:{SRD_OUT+3}], s{S_T3} offen")])
            return L
        dma_q = []
        for n in range(NT + 2):
            c, t = divmod(n, 7)
            fill = []
            if n >= 2: fill += ep_reads(n - 2)
            sc = []
            if c + 1 < 6 and n < NT:
                if t == 0: fill.append(wait_vm_token(f"w2_{c+1}"))
                if t in (0, 1):
                    for kk in range(6 * t, 6 * t + 6): fill += self.a2_reads(c + 1, kk)
                kks = {0: [], 1: [0, 1], 2: [2, 3], 3: [4, 5], 4: [6, 7], 5: [8, 9], 6: [10, 11]}[t]
                for kk in kks: sc.append((self.s_reads(kk), self.a2_scale(c + 1, kk)))
                if t == 2 and c + 2 < 6:
                    dma_q = self.w2_dma_list(c + 2, self.P2_WVO)
                    dma_q[0] = [wait_lds_token(f"a2_{c+1}")] + dma_q[0]
            wr = ex_writes(n - 1) if 1 <= n <= NT else []
            ep = ep_valu(n - 2) if n >= 2 else []
            seq = list(fill)
            if sc: seq += sc[0][0]
            seq += wr
            if sc: seq += sc[0][1]
            if len(sc) > 1: seq += sc[1][0]
            seq += ep
            if n >= 2 and (n - 2) % 7 == 6 and (n - 2) // 7 + 1 < 6:
                seq.append(I(f"ds_read_b128 v[{BIAS}:{BIAS+3}], v{BA} offset:{((n-2)//7 + 1)*128}"))
            if n < NT: seq.append(xload(n))
            if len(sc) > 1: seq += sc[1][1]
            dm = []
            if t >= 2:
                for _ in range(3):
                    if dma_q: dm.append(dma_q.pop(0))
            seq += dm
            if n < NT:
                d = D2[n % 2]
                k = 0; nf = len(seq)
                for kk in range(12):
                    u = 7 * (kk >> 1) + t
                    hb = self.hreg(u)[4*(kk & 1):4*(kk & 1)+4]
                    a_ = self.pool(c, kk)
                    cc = "0" if kk == 0 else f"a[{d}:{d+15}]"
                    e(f"v_mfma_f32_32x32x16_bf16 a[{d}:{d+15}], v[{a_}:{a_+3}], {hb}, {cc}")
                    upto = (kk + 1) * nf // 12
                    add(seq[k:upto]); k = upto
            else:
                add(seq)
            add(wait_lds_token("xw"))
            e("s_barrier")
        assert not dma_q

    def dump_h(self):
        e = self.e
        e(f"s_lshl_b32 s{S_T0}, s2, 2")
        e(f"s_add_u32 s{S_T0}, s{S_T0}, s{S_W}")
        e(f"s_mul_i32 s{S_T0}, s{S_T0}, {336*256}")
        e(f"s_add_u32 s{S_T0}, s{S_T0}, {WS_DBG}")
        e(f"v_lshl_add_u32 v1, v0, 2, s{S_T0}")
        for u in range(42):
            h = self.hreg(u)
            for i in range(8):
                e(f"global_store_dword v1, {h[i]}, s[{S_WS}:{S_WS+1}] offset:{i*256}")
            e("v_add_u32 v1, 2048, v1")
            self.add(wait_vm_all())

    def w_voffsets_w1(self, reg):
        e = self.e
        e(f"v_lshrrev_b32 v{reg}, 2, v0")
        e(f"v_mul_u32_u24 v{reg}, 1536, v{reg}")
        e(f"v_and_b32 v{reg+1}, 3, v0")
        e(f"v_lshl_add_u32 v{reg}, v{reg+1}, 4, v{reg}")
        e(f"s_mul_i32 s{S_T0}, s{S_W}, 384")
        e(f"v_add_u32 v{reg}, s{S_T0}, v{reg}")
    def w1_dma_list(self, m, reg):
        L = []
        for q in range(12):
            L.append([I(f"s_add_u32 m0, s{S_WRB}, {q*1024}"),
                      I(f"s_mov_b32 s{S_SOFF}, {q*24576 + 64*m}"),
                      I(f"buffer_load_dwordx4 v{reg}, s[{SRD_W1}:{SRD_W1+3}], s{S_SOFF} offen lds", token=f"w1_{m}")])
        return L
    def w1_dma(self, m, reg):
        for g in self.w1_dma_list(m, reg): self.add(g)

    def dump_lds(self, nbytes, per_wg):
        e = self.e
        e(f"s_mul_i32 s{S_T0}, s2, {per_wg}")
        e(f"s_add_u32 s{S_T0}, s{S_T0}, {WS_DBG}")
        e(f"s_lshl_b32 s{S_T1}, s{S_W}, 10")
        e(f"v_lshl_add_u32 v1, v0, 4, s{S_T1}")
        e(f"v_add_u32 v2, s{S_T0}, v1")
        for k in range(0, nbytes, 4096):
            e(f"ds_read_b128 v[4:7], v1")
            e(f"global_store_dwordx4 v2, v[4:7], s[{S_WS}:{S_WS+1}]")
            e("v_add_u32 v1, 4096, v1")
            e("v_add_u32 v2, 4096, v2")
            e("s_nop 1")
        self.add(wait_vm_all())

    def finish(self):
        e = self.e
        self.flush_stamps()
        e("L_end:", nocheck=True)
        e("s_endpgm")

    def build(self):
        self.prologue()
        self.stamp("start")
        self.phase0()
        if self.stage == 0:
            self.add(wait_vm_all())
            self.dump_lds(86016, 86016)
            return self.finish()
        self.flag_check()
        self.bias_finish(1)
        self.p1_setup()
        self.w2_voffset(self.W2VO_EARLY, 6)
        self.stamp("p1start")
        self.phase1()
        self.stamp("p1")
        if self.stage == 1:
            self.add(wait_vm_all())
            self.dump_h()
            return self.finish()
        self.grn_barrier()
        self.phase2()
        self.stamp("p2")
        self.finish()

    def flag_check(self):
        e = self.e
        e(f"v_readfirstlane_b32 s{S_T0}, v12")
        e(f"s_cmp_ge_u32 s{S_T0}, {NREP}")
        e("s_cbranch_scc1 L_flagok", nocheck=True)
        self.add(cond_begin())
        e("v_mov_b32 v11, 0")
        e(f"s_mov_b32 s{S_T4}, 0")
        e("L_flag:", nocheck=True)
        e("s_sleep 2")
        e(f"s_add_u32 s{S_T4}, s{S_T4}, 1")
        e(f"s_cmp_ge_u32 s{S_T4}, 0x40000")
        e("s_cbranch_scc1 L_flagok", nocheck=True)
        e(f"global_load_dword v12, v11, s[{S_DBG}:{S_DBG+1}] sc0 sc1", maybe=True)
        e("s_waitcnt vmcnt(0)")
        e(f"v_readfirstlane_b32 s{S_T0}, v12")
        e(f"s_cmp_ge_u32 s{S_T0}, {NREP}")
        e("s_cbranch_scc0 L_flag", nocheck=True)
        self.add(cond_end())
        e("L_flagok:", nocheck=True)

def wrap(body, lds=LDS_TOTAL):
    return f"""; fused dwconv3x3 + LayerNorm + GEMM + GELU + GRN + GEMM + residual, one persistent workgroup per CU
; @launch grid=({NWG},1,1) block=(256,1,1) lds={lds}
.amdgcn_target "amdgcn-amd-amdhsa--gfx950"
.text
.globl {KNAME}
.p2align 8
.type {KNAME},@function
{KNAME}:
{body}
.section .rodata,"a"
.p2align 6
.amdhsa_kernel {KNAME}
  .amdhsa_next_free_vgpr 512
  .amdhsa_next_free_sgpr 102
  .amdhsa_accum_offset 256
  .amdhsa_group_segment_fixed_size 0
  .amdhsa_kernarg_size 72
  .amdhsa_user_sgpr_count 2
  .amdhsa_user_sgpr_kernarg_segment_ptr 1
  .amdhsa_system_sgpr_workgroup_id_x 1
  .amdhsa_float_denorm_mode_32 3
.end_amdhsa_kernel
"""

def generate(stage=99, timers=False, verbose=False):
    g = Gen(stage, timers)
    g.build()
    ins, info = finalize(g.p.ins, verbose)
    return wrap(render(ins)), info

if __name__ == "__main__":
    import argparse
    ap = argparse.ArgumentParser()
    ap.add_argument("--stage", type=int, default=99)
    ap.add_argument("--timers", action="store_true")
    ap.add_argument("-o", default="out.s")
    ap.add_argument("-v", action="store_true")
    A = ap.parse_args()
    txt, info = generate(A.stage, A.timers, A.v)
    open(A.o, "w").write(txt)
    print(info)
```

```python
import sys, struct, math
from asmlib import *

KNAME = "standalone__modern_conv_block_slak__vision_kernel"
NWG = 224
H = W = 224; C = 192; HID = 768
XBYTES = H * W * C * 2
WBYTES = C * HID * 2

KAPPA = 2.0 * math.sqrt(2.0 / math.pi) * math.log2(math.e)
BETA = KAPPA * 0.044715
SG = BETA ** (1.0 / 3.0)
APRIME = KAPPA / SG
def f2u(x): return struct.unpack("<I", struct.pack("<f", x))[0]
def hx(x): return "0x%08x" % (x & 0xffffffff)
def fl(x): return hx(f2u(x))

LDS_TOTAL = 163840
PLANE = 36864; ROWP = 2304
LN_T = 12288
WRING = 110592; WR_W = 12288
TBL = 159744
STAB = TBL; BTAB = TBL + 3072; MISC = TBL + 3072 + 768
EXP = 28672
TB2 = 90112
XST = 2 * EXP

WS_PAGE = 4096
WS_BIAS = 3072
WS_CNT = 3968
WS_DBG = 1 << 20
NREP = 8

S_X, S_DW, S_W1, S_W2, S_G, S_B, S_OUT, S_DBG, S_WS = 4, 6, 8, 10, 12, 14, 16, 18, 20
SRD_X, SRD_W1, SRD_W2, SRD_OUT, SRD_DW = 24, 28, 32, 36, 40
S_W = 44; S_R0 = 45; S_C0 = 46; S_T0 = 47; S_T1 = 48; S_T2 = 49
S_NEGA = 50
S_HIM = 52
S_128 = 53; S_256 = 54
S_SOFF = 55; S_WRB = 56
S_T3 = 57; S_EX = 58
S_REP = 60
S_T4 = 61; S_T5 = 62
S_MSK = 64
S_TM = 66
S_STAMP = 70
STAMP_REGS = [0, 1, 3, 22, 23, 63, 66, 67, 68, 69, 100, 101]
S_W1T, S_W2T, S_XT = 72, 84, 96
S_MSK1 = 58

class Gen:
    def __init__(self, stage=99, timers=False, exp=()):
        self.exp = set(exp)
        self.p = Prog(); self.stage = stage; self.timers = timers; self.nstamp = 0

    def e(self, text, **m): self.p(text, **m)
    def add(self, x): self.p.add(x)

    def stamp(self, name):
        if not self.timers: return
        k = self.nstamp; self.nstamp += 1
        self.stamp_names = getattr(self, "stamp_names", []) + [name]
        self.e(f"{'s_memrealtime' if 'rt' in self.exp else 's_memtime'} s[{S_STAMP}:{S_STAMP+1}]")
        self.add(wait_lds_all())
        self.e(f"s_mov_b32 s{STAMP_REGS[k]}, s{S_STAMP}")

    def flush_stamps(self):
        if not self.timers: return
        e = self.e
        e(f"s_lshl_b32 s{S_T4}, s2, 2")
        e(f"s_add_u32 s{S_T4}, s{S_T4}, s{S_W}")
        e(f"s_lshl_b32 s{S_T4}, s{S_T4}, 7")
        e(f"s_add_u32 s{S_T4}, s{S_T4}, {WS_DBG - 262144}")
        e(f"v_mov_b32 v1, s{S_T4}")
        for k in range(self.nstamp):
            e(f"v_mov_b32 v0, s{STAMP_REGS[k]}")
            e(f"global_store_dword v1, v0, s[{S_WS}:{S_WS+1}] offset:{4*k}")
            e("s_nop 1")
        self.add(wait_vm_all())

    def prologue(self):
        e = self.e
        e(f"s_cmp_ge_u32 s2, {NWG}")
        e("s_cbranch_scc1 L_end")
        e(f"s_load_dwordx4 s[{S_X}:{S_X+3}], s[0:1], 0")
        e(f"s_load_dwordx4 s[{S_W1}:{S_W1+3}], s[0:1], 16")
        e(f"s_load_dwordx4 s[{S_G}:{S_G+3}], s[0:1], 32")
        e(f"s_load_dwordx4 s[{S_OUT}:{S_OUT+3}], s[0:1], 48")
        e(f"s_load_dwordx2 s[{S_WS}:{S_WS+1}], s[0:1], 64")
        e("v_lshrrev_b32 v1, 6, v0")
        e("v_and_b32 v0, 63, v0")
        e(f"v_readfirstlane_b32 s{S_W}, v1")
        e(f"s_and_b32 s{S_T0}, s2, 7")
        e(f"s_mul_i32 s{S_T0}, s{S_T0}, 28")
        e(f"s_lshr_b32 s{S_T1}, s2, 3")
        e(f"s_add_u32 s{S_T0}, s{S_T0}, s{S_T1}")
        e(f"s_mul_i32 s{S_T1}, s{S_T0}, 4682")
        e(f"s_lshr_b32 s{S_T1}, s{S_T1}, 16")
        e(f"s_mul_i32 s{S_R0}, s{S_T1}, 14")
        e(f"s_sub_u32 s{S_T0}, s{S_T0}, s{S_R0}")
        e(f"s_lshl_b32 s{S_C0}, s{S_T0}, 4")
        e(f"s_mov_b32 s{S_NEGA}, {fl(-APRIME)}")
        e(f"s_mov_b32 s{S_NEGA+1}, {fl(-APRIME)}")
        e(f"s_mov_b32 s{S_HIM}, 0xffff0000")
        e(f"s_movk_i32 s{S_128}, 128")
        e(f"s_movk_i32 s{S_256}, 256")
        e(f"s_mul_i32 s{S_WRB}, s{S_W}, {WR_W}")
        e(f"s_add_u32 s{S_WRB}, s{S_WRB}, {WRING}")
        e(f"s_and_b32 s{S_REP}, s2, {NREP-1}")
        e(f"s_lshl_b32 s{S_REP}, s{S_REP}, 12")
        for q in range(12):
            e(f"s_mov_b32 s{S_W1T+q}, {q*24576 - (q&3)*1024}")
            e(f"s_mov_b32 s{S_W2T+q}, {q*6144 - (q&3)*1024}")
        for j in range(4): e(f"s_mov_b32 s{S_XT+j}, {j*344064 - j*1024}")
        self.add(wait_lds_all())
        for srd, ptr, n in ((SRD_X, S_X, XBYTES), (SRD_W1, S_W1, WBYTES), (SRD_W2, S_W2, WBYTES), (SRD_OUT, S_OUT, XBYTES), (SRD_DW, S_DW, 9 * C * 2)):
            e(f"s_mov_b32 s{srd}, s{ptr}")
            e(f"s_and_b32 s{srd+1}, s{ptr+1}, 0xffff")
            e(f"s_mov_b32 s{srd+2}, {n}")
            e(f"s_mov_b32 s{srd+3}, 0x00020000")

    def phase0(self):
        e = self.e; add = self.add
        LANE = 0
        GA01, GA2, GA2L, TA1, TA2, MASK, MASKB, TMP = 1, 5, 9, 13, 14, 15, 19, 23
        AF = lambda st, f: 24 + 20 * st + 4 * f
        DC = lambda i, b: 64 + 48 * i + 4 * b
        GB = lambda st, k: 48 * st + 4 * k
        e(f"s_cmp_ge_u32 s2, {NREP}")
        e("s_cbranch_scc1 L_nozero")
        e(f"s_lshl_b32 s{S_T0}, s{S_W}, 10")
        e(f"s_add_u32 s{S_T0}, s{S_T0}, s{S_REP}")
        e(f"v_lshl_add_u32 v64, v{LANE}, 4, s{S_T0}")
        for k in range(4): e(f"v_mov_b32 v{68+k}, 0")
        e(f"global_store_dwordx4 v64, v[68:71], s[{S_WS}:{S_WS+1}] sc0 sc1", maybe=True)
        e("L_nozero:", nocheck=True)
        e(f"s_lshl_b32 s{S_T0}, s{S_W}, 10")
        e(f"v_lshl_add_u32 v72, v{LANE}, 4, s{S_T0}")
        e(f"s_add_u32 m0, s{S_T0}, {TBL}")
        e(f"buffer_load_dwordx4 v72, s[{SRD_DW}:{SRD_DW+3}], 0 offen lds", token="dw")
        XA = 80
        e(f"s_lshl_b32 s{S_T0}, s{S_W}, 3")
        e(f"v_lshrrev_b32 v73, 3, v{LANE}")
        e(f"v_add_u32 v73, s{S_T0}, v73")
        e(f"v_and_b32 v74, 7, v{LANE}")
        e("v_lshrrev_b32 v75, 1, v74")
        e("v_and_b32 v74, 1, v74")
        e("v_lshlrev_b32 v74, 4, v74")
        e(f"s_sub_u32 s{S_T1}, s{S_R0}, 1")
        e(f"s_sub_u32 s{S_T2}, s{S_C0}, 1")
        e(f"s_movk_i32 s{S_T3}, 224")
        e(f"s_movk_i32 s{S_T4}, 384")
        e(f"s_lshl_b32 s{S_T5}, s{S_W}, 10")
        e("v_mov_b32 v79, 0x80000000")
        for i in range(9):
            A = XA + i
            e(f"v_add_u32 v76, {32*i}, v73")
            e("v_mul_u32_u24 v77, 3641, v76")
            e("v_lshrrev_b32 v77, 16, v77")
            e("v_mul_u32_u24 v78, 18, v77")
            e("v_sub_u32 v76, v76, v78")
            e("v_bfe_u32 v78, v76, 1, 2")
            e("v_xor_b32 v78, v78, v75")
            e("v_lshl_add_u32 v78, v78, 5, v74")
            e(f"v_add_u32 v77, s{S_T1}, v77")
            e(f"v_add_u32 v76, s{S_T2}, v76")
            e("v_max_u32 v70, v76, v77")
            e(f"v_cmp_gt_u32 vcc, s{S_T3}, v70")
            e(f"v_mad_u32_u24 v{A}, v77, s{S_T3}, v76")
            e(f"v_mad_u32_u24 v{A}, v{A}, s{S_T4}, v78")
            e(f"s_add_u32 m0, s{S_T5}, {i*4096}")
            e(f"v_cndmask_b32 v{A}, v79, v{A}, vcc")
            e(f"buffer_load_dwordx4 v{A}, s[{SRD_X}:{SRD_X+3}], 0 offen lds", token="x0")
        for pl, so in ((1, S_128), (2, S_256)):
            for i in range(9):
                e(f"s_add_u32 m0, s{S_T5}, {pl*PLANE + i*4096}")
                e(f"buffer_load_dwordx4 v{XA+i}, s[{SRD_X}:{SRD_X+3}], s{so} offen lds", token=f"x{pl}")
        e(f"s_lshl_b32 s{S_T0}, s{S_W}, 2")
        e(f"s_min_u32 s{S_T0}, s{S_T0}, 10")
        e(f"s_mul_i32 s{S_T1}, s{S_T0}, {ROWP}")
        e(f"v_and_b32 v64, 15, v{LANE}")
        e(f"v_lshrrev_b32 v65, 4, v{LANE}")
        e("v_lshrrev_b32 v66, 1, v65")
        e("v_and_b32 v67, 1, v65")
        e("v_lshlrev_b32 v68, 4, v67")
        e(f"v_add_u32 v68, s{S_T1}, v68")
        e("v_add_u32 v69, v64, v66")
        e("v_lshl_add_u32 v70, v69, 7, v68")
        e("v_bfe_u32 v71, v69, 1, 2")
        for cu in range(4):
            e(f"v_xor_b32 v72, {cu}, v71")
            e(f"v_lshl_add_u32 v{GA01+cu}, v72, 5, v70")
        e("v_add_u32 v69, 2, v64")
        e("v_lshl_add_u32 v70, v69, 7, v68")
        e("v_bfe_u32 v71, v69, 1, 2")
        e(f"v_mul_u32_u24 v73, {ROWP}, v66")
        for cu in range(4):
            e(f"v_xor_b32 v72, {cu}, v71")
            e(f"v_lshl_add_u32 v{GA2L+cu}, v72, 5, v70")
            e(f"v_add_u32 v{GA2+cu}, v{GA2L+cu}, v73")
        e("v_lshrrev_b32 v69, 1, v64")
        e("v_lshlrev_b32 v69, 2, v69")
        e(f"v_add_u32 v69, {TBL}, v69")
        e("v_mul_u32_u24 v70, 384, v66")
        e(f"v_add_u32 v{TA1}, v69, v70")
        e("v_mul_u32_u24 v70, 1152, v66")
        e(f"v_add3_u32 v{TA2}, v69, v70, s{S_256}")
        e(f"v_add_u32 v{TA2}, 512, v{TA2}")
        e("v_lshrrev_b32 v69, 3, v64")
        e("v_and_b32 v70, 1, v64")
        e("v_mov_b32 v71, 0xffff")
        e(f"v_mov_b32 v72, s{S_HIM}")
        e("v_cmp_eq_u32 vcc, 1, v70")
        e("v_cndmask_b32 v71, v71, v72, vcc")
        e("v_cmp_eq_u32 vcc, v69, v67")
        e("v_cndmask_b32 v71, 0, v71, vcc")
        e("v_bfe_u32 v69, v64, 1, 2")
        for j in range(4):
            e(f"v_cmp_eq_u32 vcc, {j}, v69")
            e(f"v_cndmask_b32 v{MASK+j}, 0, v71, vcc")
        e("v_cmp_eq_u32 vcc, 0, v66")
        for j in range(4):
            e(f"v_cndmask_b32 v{MASKB+j}, 0, v{MASK+j}, vcc")
        W1VO0 = 23
        self.w_voffsets_w1(W1VO0, 64)
        add(wait_vm_token("dw"))
        e("s_barrier")
        e(f"s_cmp_ge_u32 s2, {NREP}")
        e("s_cbranch_scc1 L_noflag")
        e(f"s_cmp_lg_u32 s{S_W}, 0")
        e("s_cbranch_scc1 L_noflag")
        e(f"v_cmp_eq_u32 vcc, 0, v{LANE}")
        e(f"s_and_saveexec_b64 s[{S_EX}:{S_EX+1}], vcc")
        e("v_mov_b32 v64, 0")
        e("v_mov_b32 v65, 1")
        e(f"global_atomic_add v64, v65, s[{S_DBG}:{S_DBG+1}]", maybe=True)
        e(f"s_mov_b64 exec, s[{S_EX}:{S_EX+1}]")
        e("L_noflag:", nocheck=True)

        def a_reads(b):
            st = b & 1
            L = []
            for dy in range(3): L.append(I(f"ds_read_b32 v{AF(st,dy)}, v{TA1} offset:{dy*1152 + b*32}"))
            L.append(I(f"ds_read_b32 v{AF(st,3)}, v{TA2} offset:{b*32}"))
            L.append(I(f"ds_read_b32 v{AF(st,4)}, v{TA1} offset:{3072 + b*32}"))
            return L
        def a_build(b):
            st = b & 1
            L = []
            for f in range(5):
                M = MASKB if f == 4 else MASK
                for j in (3, 2, 1, 0):
                    L.append(I(f"v_and_b32 v{AF(st,f)+j}, v{AF(st,f)}, v{M+j}"))
            return L
        def g_reads(b):
            st = b & 1; cu = b & 3
            L = []
            order = [(0,0),(1,0),(0,1),(1,1),(0,2),(1,2),(0,3),(1,3),(0,4),(1,4),(0,5),(1,5)]
            for typ, r in order:
                if typ == 0: L.append(I(f"ds_read_b128 a[{GB(st,r)}:{GB(st,r)+3}], v{GA01+cu} offset:{r*ROWP}"))
                else:
                    reg = GA2L + cu if r == 5 else GA2 + cu
                    L.append(I(f"ds_read_b128 a[{GB(st,6+r)}:{GB(st,6+r)+3}], v{reg} offset:{r*ROWP}"))
            return L
        def mfmas(b):
            st = b & 1
            L = []
            seq = []
            for step in range(5):
                for i in range(4): seq.append((step, i))
            for step, i in seq:
                f, g = [(0, i), (3, 6+i), (1, i+1), (2, i+2), (4, 6+i+2)][step]
                d = DC(i, b)
                c = "0" if step == 0 else f"v[{d}:{d+3}]"
                L.append(I(f"v_mfma_f32_16x16x32_bf16 v[{d}:{d+3}], v[{AF(st,f)}:{AF(st,f)+3}], a[{GB(st,g)}:{GB(st,g)+3}], {c}"))
            return L
        def plane_step():
            return [I(f"v_add_u32 v{r}, {PLANE}, v{r}") for r in range(GA01, GA01 + 12)]

        add(a_reads(0)); add(a_build(0)); add(a_reads(1))
        add(wait_vm_token("x0"))
        e("s_barrier")
        add(g_reads(0))
        for b in range(12):
            M = mfmas(b)
            fill = []
            if b == 8: self_w1 = self.w1_dma_list(0, W1VO0)
            if b >= 8: fill += self_w1[:3]; self_w1 = self_w1[3:]
            if b + 1 < 12:
                if (b + 1) % 4 == 0:
                    fill += plane_step()
                    fill += [wait_vm_token(f"x{(b+1)//4}"), I("s_barrier")]
                    if self.timers: pass
                g = g_reads(b + 1)
                ab = a_build(b + 1)
                mix = []
                for k in range(12):
                    mix.append(g[k]); mix += ab[k*20//12:(k+1)*20//12]
                fill += mix
            out = []; k = 0; n = len(fill)
            for j, m in enumerate(M):
                out.append(m)
                upto = (j + 1) * n // 18 if j < 18 else n
                out += fill[k:min(upto, n)]; k = max(k, min(upto, n))
            add(out)
            if b + 2 < 12: add(a_reads(b + 2))
        self.stamp("conv")
        add(wait_lds_all())
        e("s_barrier")

        e("v_mov_b32 v11, 0")
        e(f"global_load_dword v12, v11, s[{S_DBG}:{S_DBG+1}] sc0 sc1")
        self.bias_loads(1)
        SP = lambda i: 24 + 2 * i
        S1 = lambda i: 32 + i
        Wv, Yv, Zv = 36, 37, 38
        MM = lambda i: 40 + 2 * i
        def pairs(i): return [DC(i, 0) + 2 * k for k in range(24)]
        def reduce_bcast(scale_code):
            e(f"v_permlane32_swap_b32 v{S1(0)}, v{S1(1)}")
            e(f"v_permlane32_swap_b32 v{S1(2)}, v{S1(3)}")
            e(f"v_add_f32 v{S1(0)}, v{S1(0)}, v{S1(1)}")
            e(f"v_add_f32 v{S1(2)}, v{S1(2)}, v{S1(3)}")
            e(f"v_permlane16_swap_b32 v{S1(0)}, v{S1(2)}")
            e(f"v_add_f32 v{Wv}, v{S1(0)}, v{S1(2)}")
            scale_code(Wv)
            e(f"v_mov_b32 v{Yv}, v{Wv}")
            e(f"v_permlane16_swap_b32 v{Wv}, v{Yv}")
            e(f"v_mov_b32 v{MM(0)}, v{Wv}")
            e(f"v_mov_b32 v{MM(2)}, v{Yv}")
            e(f"v_permlane32_swap_b32 v{MM(0)}, v{Wv}")
            e(f"v_permlane32_swap_b32 v{MM(2)}, v{Yv}")
            e(f"v_mov_b32 v{MM(1)}, v{Wv}")
            e(f"v_mov_b32 v{MM(3)}, v{Yv}")
        add(align8())
        for i in range(4):
            P_ = pairs(i)
            e(f"v_pk_add_f32 v[{SP(i)}:{SP(i)+1}], v[{P_[0]}:{P_[0]+1}], v[{P_[1]}:{P_[1]+1}]")
        for k in range(2, 24):
            for i in range(4):
                P_ = pairs(i)
                e(f"v_pk_add_f32 v[{SP(i)}:{SP(i)+1}], v[{SP(i)}:{SP(i)+1}], v[{P_[k]}:{P_[k]+1}]")
        for i in range(4): e(f"v_add_f32 v{S1(i)}, v{SP(i)}, v{SP(i)+1}")
        reduce_bcast(lambda r: e(f"v_mul_f32 v{r}, {fl(1.0/192)}, v{r}"))
        add(align8())
        for k in range(24):
            for i in range(4):
                P_ = pairs(i)
                e(f"v_pk_add_f32 v[{P_[k]}:{P_[k]+1}], v[{P_[k]}:{P_[k]+1}], v[{MM(i)}:{MM(i)+1}] op_sel_hi:[1,0] neg_lo:[0,1] neg_hi:[0,1]")
        for i in range(4):
            P_ = pairs(i)
            e(f"v_pk_mul_f32 v[{SP(i)}:{SP(i)+1}], v[{P_[0]}:{P_[0]+1}], v[{P_[0]}:{P_[0]+1}]")
        for k in range(1, 24):
            for i in range(4):
                P_ = pairs(i)
                e(f"v_pk_fma_f32 v[{SP(i)}:{SP(i)+1}], v[{P_[k]}:{P_[k]+1}], v[{P_[k]}:{P_[k]+1}], v[{SP(i)}:{SP(i)+1}]")
        for i in range(4): e(f"v_add_f32 v{S1(i)}, v{SP(i)}, v{SP(i)+1}")
        def rs(r):
            e(f"v_mov_b32 v{Zv}, {fl(1e-5)}")
            e(f"v_fmac_f32 v{Zv}, {fl(1.0/192)}, v{r}")
            e(f"v_rsq_f32 v{r}, v{Zv}")
            e(f"v_mul_f32 v{r}, {fl(SG)}, v{r}")
        reduce_bcast(rs)
        LA = 13
        e(f"s_lshl_b32 s{S_T0}, s{S_W}, 2")
        e(f"s_min_u32 s{S_T0}, s{S_T0}, 10")
        e(f"s_mul_i32 s{S_T0}, s{S_T0}, {LN_T//2}")
        e(f"v_and_b32 v14, 15, v{LANE}")
        e("v_lshlrev_b32 v14, 4, v14")
        e(f"v_lshrrev_b32 v15, 5, v{LANE}")
        e("v_lshl_add_u32 v14, v15, 9, v14")
        e(f"v_bfe_u32 v15, v{LANE}, 4, 1")
        e("v_lshl_add_u32 v14, v15, 3, v14")
        e(f"v_add_u32 v{LA}, s{S_T0}, v14")
        add(align8())
        for b in range(12):
            for i in range(4):
                d = DC(i, b)
                for k in (0, 2):
                    e(f"v_pk_mul_f32 v[{d+k}:{d+k+1}], v[{d+k}:{d+k+1}], v[{MM(i)}:{MM(i)+1}] op_sel_hi:[1,0]")
            for i in range(4):
                d = DC(i, b)
                e(f"v_cvt_pk_bf16_f32 v{d}, v{d}, v{d+1}")
                e(f"v_cvt_pk_bf16_f32 v{d+1}, v{d+2}, v{d+3}")
            for i in range(4):
                d = DC(i, b)
                e(f"ds_write_b64 v{LA}, v[{d}:{d+1}] offset:{(i>>1)*LN_T + (i&1)*256 + b*1024}")
        add(wait_lds_all())
        e("s_barrier")
        self.stamp("ln")

    P1_BLO, P1_BHI, P1_ATR, P1_WVO, P1_ATOM = 1, 2, 3, 4, 5
    P1_D = (8, 24, 40); P1_T = (56, 72); P1_ACC = 88; P1_HT = 104
    NA_UNITS = 28
    @staticmethod
    def hreg(u):
        return R("a", 8 * u, 8) if u < Gen.NA_UNITS else R("v", 144 + 8 * (u - Gen.NA_UNITS), 8)
    @staticmethod
    def a1(jj):
        return R("a", 240 + 4 * jj, 4) if jj < 4 else R("v", 112 + 4 * (jj - 4), 4)
    def skip(self, tag): return tag in self.exp

    def p1_setup(self):
        e = self.e
        e(f"s_and_b32 s{S_T0}, s{S_W}, 1")
        e(f"s_mul_i32 s{S_T1}, s{S_T0}, {4*LN_T}")
        e(f"v_lshl_add_u32 v{self.P1_BLO}, v0, 4, s{S_T1}")
        e(f"s_mul_i32 s{S_T1}, s{S_T0}, {3*LN_T}")
        e(f"s_sub_u32 s{S_T1}, {3*LN_T}, s{S_T1}")
        e(f"v_lshl_add_u32 v{self.P1_BHI}, v0, 4, s{S_T1}")
        e("v_lshrrev_b32 v6, 5, v0")
        e("v_lshlrev_b32 v6, 9, v6")
        e("v_bfe_u32 v7, v0, 2, 2")
        e("v_lshl_add_u32 v6, v7, 6, v6")
        e("v_bfe_u32 v7, v0, 4, 1")
        e("v_lshl_add_u32 v6, v7, 5, v6")
        e("v_and_b32 v7, 3, v0")
        e("v_lshl_add_u32 v6, v7, 3, v6")
        e(f"v_add_u32 v{self.P1_ATR}, s{S_WRB}, v6")
        self.w_voffsets_w1(self.P1_WVO, 7)
        e("v_bfe_u32 v7, v0, 2, 2")
        e("v_and_b32 v6, 3, v0")
        e("v_lshl_add_u32 v6, v7, 3, v6")
        e("v_lshrrev_b32 v7, 5, v0")
        e("v_lshl_add_u32 v6, v7, 2, v6")
        e(f"s_mul_i32 s{S_T0}, s{S_W}, 768")
        e(f"s_add_u32 s{S_T0}, s{S_T0}, s{S_REP}")
        e(f"v_lshl_add_u32 v{self.P1_ATOM}, v6, 2, s{S_T0}")
        e(f"s_mov_b32 s{S_MSK}, 0xcccccccc")
        e(f"s_mov_b32 s{S_MSK+1}, 0xcccccccc")
        e(f"s_mov_b32 s{S_MSK1}, 0xaaaaaaaa")
        e(f"s_mov_b32 s{S_MSK1+1}, 0xaaaaaaaa")
        self.w2_voffset(self.W2VO_EARLY, 6)

    def a1_reads(self, jj):
        r = self.a1(jj)
        return [I(f"ds_read_b64_tr_b16 {r[2*qq:2*qq+2]}, v{self.P1_ATR} offset:{jj*1024 + qq*256}") for qq in range(2)]
    def b_read(self, g):
        u, jj = divmod(g, 12); t = u % 7
        base, off = (self.P1_BLO, t * LN_T) if t < 3 else (self.P1_BHI, (t - 3) * LN_T)
        b = 224 + 4 * (g % 4)
        return I(f"ds_read_b128 a[{b}:{b+3}], v{base} offset:{off + jj*1024}")
    def sq_reduce(self, m):
        A_ = self.P1_ACC
        def dpp(d, s_, ctl, bank): return I(f"v_add_f32_dpp v{d}, v{s_}, v{s_} {ctl} row_mask:0xf bank_mask:{bank}")
        L = []
        for r in range(8): L.append(dpp(A_+r, A_+r, "row_ror:8", "0x3"))
        for r in range(8): L.append(dpp(A_+r, A_+r+8, "row_ror:8", "0xc"))
        for r in range(4): L.append(dpp(A_+r, A_+r, "row_shl:4", "0x5"))
        for r in range(4): L.append(dpp(A_+r, A_+r+4, "row_shr:4", "0xa"))
        for r in range(4): L.append(dpp(A_+4+r, A_+r, "quad_perm:[2,3,0,1]", "0xf"))
        L.append(I(f"v_cndmask_b32 v{A_}, v{A_+4}, v{A_+6}, s[{S_MSK}:{S_MSK+1}]"))
        L.append(I(f"v_cndmask_b32 v{A_+1}, v{A_+5}, v{A_+7}, s[{S_MSK}:{S_MSK+1}]"))
        for r in range(2): L.append(dpp(A_+2+r, A_+r, "quad_perm:[1,0,3,2]", "0xf"))
        L.append(I(f"v_cndmask_b32 v{A_+4}, v{A_+2}, v{A_+3}, s[{S_MSK1}:{S_MSK1+1}]"))
        L.append(I(f"v_mov_b32 v6, v{A_+4}"))
        L.append(I(f"v_permlane16_swap_b32 v{A_+4}, v6"))
        L.append(I(f"v_add_f32 v6, v6, v{A_+4}"))
        L.append([I("s_mov_b32 exec_lo, 0xffff"), I("s_mov_b32 exec_hi, 0xffff"),
                  I(f"global_atomic_add_f32 v{self.P1_ATOM}, v6, s[{S_WS}:{S_WS+1}] offset:{m*128}", token="atom"),
                  I("s_mov_b64 exec, -1")])
        return L

    def phase1(self):
        e = self.e; add = self.add
        D, T, ACC, HT = self.P1_D, self.P1_T, self.P1_ACC, self.P1_HT
        NU = 42
        add(wait_vm_token("w1_0"))
        for jj in range(12): add(self.a1_reads(jj))
        for g in range(4): add(self.b_read(g))
        dma_q = []
        for n in range(NU + 2):
            tr = []
            tr_e = [I(f"v_exp_f32 v{T[(n-1)%2]+i}, v{T[(n-1)%2]+i}") for i in range(16)] if 1 <= n <= NU else []
            tr_r = [I(f"v_rcp_f32 v{T[n%2]+i}, v{T[n%2]+i}") for i in range(16)] if 2 <= n <= NU + 1 else []
            for i in range(16):
                if tr_e: tr.append(tr_e[i])
                if tr_r: tr.append(tr_r[i])
            tail = []
            u3 = n - 3
            if 0 <= u3 < self.NA_UNITS:
                h = self.hreg(u3)
                tail += [I(f"v_accvgpr_write_b32 {h[i]}, v{HT+i}") for i in range(8)]
            body = list(tr)
            if n >= 9 and (n - 2) % 7 == 0 and n <= NU + 1 and not self.skip("nored"):
                red = self.sq_reduce((n - 2) // 7 - 1)
                mix = []; k = 0
                for i, x in enumerate(body):
                    mix.append(x)
                    upto = (i + 1) * len(red) // len(body)
                    mix += red[k:upto]; k = upto
                body = mix + red[k:]
            if n % 7 == 1 and n // 7 + 1 < 6:
                dma_q = self.w1_dma_list(n // 7 + 1, self.P1_WVO)
                dma_q[0] = [I(f"v_add_u32 v{self.P1_WVO}, 64, v{self.P1_WVO}")] + dma_q[0]
            if n == 36: dma_q = self.w2_dma_list(0, self.W2VO_EARLY)
            dm = []
            for _ in range(4):
                if dma_q: dm.append(dma_q.pop(0))
            reload = (n % 7 == 6 and n // 7 + 1 < 6 and not self.skip("noreload"))
            if n < NU:
                Dn = D[n % 3]
                ntr = len(body)
                if tail or not tr:
                    gaps = [(ntr * (j + 1)) // 11 - (ntr * j) // 11 for j in range(11)] + [0]
                else:
                    keep = min(5, ntr)
                    gaps = [((ntr - keep) * (j + 1)) // 11 - ((ntr - keep) * j) // 11 for j in range(11)] + [keep]
                if reload: add(wait_vm_token(f"w1_{n//7+1}"))
                k = 0
                for jj in range(12):
                    g = 12 * n + jj
                    b = 224 + 4 * (g % 4)
                    if jj % 2 == 0:
                        b2 = 224 + 4 * ((g + 1) % 4)
                        add(need(f"a[{b}:{b+3}]", f"a[{b2}:{b2+3}]", self.a1(jj), self.a1(jj + 1)))
                    c = "0" if jj == 0 else f"v[{Dn}:{Dn+15}]"
                    e(f"v_mfma_f32_32x32x16_bf16 v[{Dn}:{Dn+15}], {self.a1(jj)}, a[{b}:{b+3}], {c}")
                    if g + 4 < 12 * NU and not self.skip("nobread"): add(self.b_read(g + 4))
                    if reload: add(self.a1_reads(jj))
                    add(body[k:k + gaps[jj]]); k += gaps[jj]
                    if dm and jj in (1, 4, 7, 10):
                        d_ = dm.pop(0)
                        if not self.skip("nodma1"): add(d_)
                add(body[k:])
                add(tail)
            else:
                add(body); add(tail)
                for d_ in dm: add(d_)
            if self.timers and n in (): self.stamp(f"E{n}")
            add(align8())
            if n >= 2:
                u = n - 2; Tb = T[n % 2]; Dc = D[u % 3]
                for i in range(0, 16, 2): e(f"v_pk_mul_f32 v[{Tb+i}:{Tb+i+1}], v[{Tb+i}:{Tb+i+1}], v[{Dc+i}:{Dc+i+1}]")
            if 1 <= n <= NU:
                Ta = T[(n - 1) % 2]
                for i in range(0, 16, 2): e(f"v_pk_add_f32 v[{Ta+i}:{Ta+i+1}], v[{Ta+i}:{Ta+i+1}], 1.0 op_sel_hi:[1,0]")
            if n >= 2:
                u = n - 2; Tb = T[n % 2]
                for i in range(0, 16, 2):
                    if u % 7 == 0: e(f"v_pk_mul_f32 v[{ACC+i}:{ACC+i+1}], v[{Tb+i}:{Tb+i+1}], v[{Tb+i}:{Tb+i+1}]")
                    else: e(f"v_pk_fma_f32 v[{ACC+i}:{ACC+i+1}], v[{Tb+i}:{Tb+i+1}], v[{Tb+i}:{Tb+i+1}], v[{ACC+i}:{ACC+i+1}]")
                h = self.hreg(u)
                for i in range(8):
                    dst = f"v{HT+i}" if u < self.NA_UNITS else str(h[i])
                    e(f"v_cvt_pk_bf16_f32 {dst}, v{Tb+2*i}, v{Tb+2*i+1}")
            if n < NU:
                Tz = T[n % 2]; Dn = D[n % 3]
                for i in range(0, 16, 2): e(f"v_pk_fma_f32 v[{Tz+i}:{Tz+i+1}], v[{Dn+i}:{Dn+i+1}], v[{Dn+i}:{Dn+i+1}], s[{S_NEGA}:{S_NEGA+1}] neg_lo:[1,0,0] neg_hi:[1,0,0]")
                for i in range(0, 16, 2): e(f"v_pk_mul_f32 v[{Tz+i}:{Tz+i+1}], v[{Tz+i}:{Tz+i+1}], v[{Dn+i}:{Dn+i+1}]")
        assert not dma_q
        add(self.sq_reduce(5))

    P2_EXR, P2_LO, P2_HI, P2_BR, P2_XO, P2_ATR, P2_SB, P2_WVO, P2_XL, P2_XDV = 0, 1, 5, 9, 10, 11, 12, 13, 14, 15
    P2_TMP, P2_S, P2_EP, P2_X, P2_POOL = 16, 20, (28, 36), (44, 46), 48
    P2_LANE = 47
    W2VO_EARLY = 7

    def w2_voffset(self, reg, t1, lane=0):
        e = self.e
        e(f"v_lshrrev_b32 v{reg}, 2, v{lane}")
        e(f"s_mul_i32 s{S_T0}, s{S_W}, 192")
        e(f"v_add_u32 v{reg}, s{S_T0}, v{reg}")
        e(f"v_mul_u32_u24 v{reg}, 384, v{reg}")
        e(f"v_and_b32 v{t1}, 3, v{lane}")
        e(f"v_lshl_add_u32 v{reg}, v{t1}, 4, v{reg}")

    def w2_dma_list(self, c, reg):
        L = []
        for q in range(12):
            grp = []
            if q % 4 == 0: grp.append(I(f"s_add_u32 m0, s{S_WRB}, {(q//4)*4096}"))
            grp.append(I(f"buffer_load_dwordx4 v{reg}, s[{SRD_W2}:{SRD_W2+3}], s{S_W2T+q} offen offset:{(q&3)*1024} lds", token=f"w2_{c}"))
            L.append(grp)
        return L
    def x_dma_list(self, c):
        L = [I(f"s_add_u32 m0, s{S_T5}, {(c&1)*4096}")]
        for j in range(4):
            L.append(I(f"buffer_load_dwordx4 v{self.P2_XDV}, s[{SRD_X}:{SRD_X+3}], s{S_XT+j} offen offset:{j*1024} lds", token=f"xs_{c}"))
        return L

    def pool(self, c, kk): return self.P2_POOL + 4 * ((12 * c + kk) % 24)
    def a2_reads(self, c, kk, r=None):
        r = self.pool(c, kk) if r is None else r
        return [I(f"ds_read_b64_tr_b16 v[{r+2*qq}:{r+2*qq+1}], v{self.P2_ATR} offset:{kk*1024 + qq*512}", token=f"a2_{c}") for qq in range(2)]
    def s_reads(self, kk, S=None):
        S = self.P2_S if S is None else S
        return [I(f"ds_read_b128 v[{S+4*qq}:{S+4*qq+3}], v{self.P2_SB} offset:{(16*kk + 8*qq)*4}") for qq in range(2)]
    def a2_scale(self, c, kk):
        r = self.pool(c, kk); T = self.P2_TMP; SV = self.P2_S + (kk >> 1); j0 = 8 * (kk & 1)
        L = []
        for jp in (0, 2):
            t = [(T, T+1), (T+2, T+3)]
            for d in range(2):
                L.append(I(f"v_lshlrev_b32 v{t[d][0]}, 16, v{r+jp+d}"))
                L.append(I(f"v_and_b32 v{t[d][1]}, s{S_HIM}, v{r+jp+d}"))
            for d in range(2):
                L.append(I(f"v_mul_f32_dpp v{t[d][0]}, v{SV}, v{t[d][0]} row_newbcast:{j0 + 2*(jp+d)} row_mask:0xf bank_mask:0xf"))
                L.append(I(f"v_mul_f32_dpp v{t[d][1]}, v{SV}, v{t[d][1]} row_newbcast:{j0 + 2*(jp+d) + 1} row_mask:0xf bank_mask:0xf"))
            for d in range(2):
                L.append(I(f"v_cvt_pk_bf16_f32 v{r+jp+d}, v{t[d][0]}, v{t[d][1]}"))
        return L

    def wave_allreduce(self, r, t):
        e = self.e
        for k in (8, 4, 2, 1):
            e(f"v_add_f32_dpp v{r}, v{r}, v{r} row_ror:{k} row_mask:0xf bank_mask:0xf")
        e(f"v_mov_b32 v{t}, v{r}")
        e(f"v_permlane16_swap_b32 v{r}, v{t}")
        e(f"v_add_f32 v{r}, v{r}, v{t}")
        e(f"v_mov_b32 v{t}, v{r}")
        e(f"v_permlane32_swap_b32 v{r}, v{t}")
        e(f"v_add_f32 v{r}, v{r}, v{t}")

    def bias_loads(self, W):
        e = self.e
        e(f"s_min_u32 s{S_T0}, s2, 191")
        e(f"s_lshl_b32 s{S_T0}, s{S_T0}, 1")
        e(f"s_mul_i32 s{S_T1}, s{S_W}, 192")
        e(f"v_add_u32 v{W+6}, s{S_T1}, v0")
        e(f"v_mul_u32_u24 v{W+7}, 384, v{W+6}")
        e(f"v_add_u32 v{W+7}, s{S_T0}, v{W+7}")
        e(f"v_lshlrev_b32 v{W+6}, 1, v{W+6}")
        for j in range(3):
            e(f"global_load_ushort v{W+3+j}, v{W+6}, s[{S_B}:{S_B+1}] offset:{128*j}")
        for j in range(3):
            e(f"global_load_ushort v{W+j}, v{W+7}, s[{S_W2}:{S_W2+1}]")
            if j < 2: e(f"v_add_u32 v{W+7}, {64*384}, v{W+7}")
    def bias_finish(self, W):
        e = self.e
        for j in range(6): e(f"v_lshlrev_b32 v{W+j}, 16, v{W+j}")
        e(f"v_mul_f32 v{W}, v{W}, v{W+3}")
        e(f"v_fmac_f32 v{W}, v{W+1}, v{W+4}")
        e(f"v_fmac_f32 v{W}, v{W+2}, v{W+5}")
        self.wave_allreduce(W, W + 1)
        e(f"s_cmp_ge_u32 s2, 192")
        e("s_cbranch_scc1 L_nobias", nocheck=True)
        e(f"s_lshl_b32 s{S_T0}, s2, 2")
        e(f"s_add_u32 s{S_T0}, s{S_T0}, {WS_BIAS}")
        e(f"v_mov_b32 v{W+1}, s{S_T0}")
        e("s_mov_b64 exec, 1")
        e(f"global_atomic_add_f32 v{W+1}, v{W}, s[{S_WS}:{S_WS+1}]", maybe=True)
        e("s_mov_b64 exec, -1")
        e("L_nobias:", nocheck=True)

    def U(self, kk): return self.P2_POOL + 8 * kk

    def grn_barrier(self):
        e = self.e; add = self.add
        LN_ = self.P2_LANE
        SUMR = [16, 20, 24, 28, 32, 36, 40, 44]
        GL = (19, 23, 27); BV = 31; T0, T1, T2 = 35, 39, 43
        e(f"v_mov_b32 v{LN_}, v0")
        e(f"s_mul_i32 s{S_T0}, s{S_W}, 192")
        e(f"v_mul_u32_u24 v{T0}, 3, v0")
        e(f"v_add_u32 v{T0}, s{S_T0}, v{T0}")
        e(f"v_lshlrev_b32 v{T0}, 1, v{T0}")
        for k in range(3): e(f"global_load_ushort v{GL[k]}, v{T0}, s[{S_G}:{S_G+1}] offset:{2*k}")
        add(wait_vm_all())
        self.stamp("atomdone")
        e("s_barrier")
        e(f"s_cmp_lg_u32 s{S_W}, 0")
        e("s_cbranch_scc1 L_arrived", nocheck=True)
        e(f"s_add_u32 s{S_T0}, s{S_REP}, {WS_CNT}")
        e(f"v_mov_b32 v{T0}, s{S_T0}")
        e(f"v_mov_b32 v{T1}, 1")
        e("s_mov_b64 exec, 1")
        e(f"global_atomic_add v{T0}, v{T1}, s[{S_WS}:{S_WS+1}]", maybe=True)
        e("s_mov_b64 exec, -1")
        e("L_arrived:", nocheck=True)
        self.p2_setup()
        for kk in range(12): add(self.a2_reads(0, kk, self.U(kk) + 4))
        for kk in range(12):
            u = self.U(kk)
            for j in range(4):
                e(f"v_lshlrev_b32 v{u+2*j}, 16, v{u+4+j}")
                e(f"v_and_b32 v{u+2*j+1}, s{S_HIM}, v{u+4+j}")
        e(f"v_add_u32 v{self.P2_WVO}, 64, v{self.P2_WVO}")
        for d_ in self.w2_dma_list(1, self.P2_WVO): add(d_)
        e(f"s_cmp_lg_u32 s{S_W}, 0")
        e("s_cbranch_scc1 L_polled", nocheck=True)
        add(cond_begin())
        e(f"v_lshlrev_b32 v{T0}, 12, v{LN_}")
        e(f"v_add_u32 v{T0}, {WS_CNT}, v{T0}")
        e("s_mov_b64 exec, 0xff")
        e(f"s_mov_b32 s{S_T4}, 0")
        e("L_poll:", nocheck=True)
        e(f"global_load_dword v{T1}, v{T0}, s[{S_WS}:{S_WS+1}] sc0 sc1", maybe=True)
        e("s_waitcnt vmcnt(0)")
        e(f"v_cmp_gt_u32 vcc, {NWG//NREP}, v{T1}")
        e("s_nop 1")
        e("s_and_b64 vcc, vcc, exec")
        e("s_cbranch_vccz L_pollok", nocheck=True)
        e("s_sleep 1")
        e(f"s_add_u32 s{S_T4}, s{S_T4}, 1")
        e(f"s_cmp_lt_u32 s{S_T4}, 0x40000")
        e("s_cbranch_scc1 L_poll", nocheck=True)
        e("L_pollok:", nocheck=True)
        e("s_mov_b64 exec, -1")
        add(cond_end())
        e("L_polled:", nocheck=True)
        e("s_barrier")
        self.stamp("barrier")
        e(f"s_mul_i32 s{S_T0}, s{S_W}, 768")
        e(f"v_mul_u32_u24 v{T0}, 12, v{LN_}")
        e(f"v_add_u32 v{T0}, s{S_T0}, v{T0}")
        for r in range(NREP):
            e(f"global_load_dwordx3 v[{SUMR[r]}:{SUMR[r]+2}], v{T0}, s[{S_WS}:{S_WS+1}] sc0 sc1")
            if r < NREP - 1: e(f"v_add_u32 v{T0}, {WS_PAGE}, v{T0}")
        e(f"v_mul_u32_u24 v{T1}, 12, v{LN_}")
        e(f"v_add_u32 v{T2}, {WS_BIAS}, v{T1}")
        BVS = (31, self.P2_BR, T2)
        e(f"global_load_dword v{BVS[0]}, v{T2}, s[{S_WS}:{S_WS+1}] sc0 sc1")
        e(f"global_load_dword v{BVS[1]}, v{T2}, s[{S_WS}:{S_WS+1}] offset:4 sc0 sc1")
        e(f"global_load_dword v{BVS[2]}, v{T2}, s[{S_WS}:{S_WS+1}] offset:8 sc0 sc1")
        G0 = SUMR[0]
        for r in range(1, NREP):
            for k in range(3): e(f"v_add_f32 v{G0+k}, v{G0+k}, v{SUMR[r]+k}")
        e(f"v_mov_b32 v{T0}, {fl(1e-6)}")
        e(f"s_mov_b32 s{S_T1}, {fl(1.0/(SG*SG))}")
        for k in range(3): e(f"v_fma_f32 v{G0+k}, v{G0+k}, s{S_T1}, v{T0}")
        for k in range(3): e(f"v_sqrt_f32 v{G0+k}, v{G0+k}")
        e(f"s_mul_i32 s{S_T0}, s{S_W}, 1536")
        e(f"s_add_u32 s{S_T0}, s{S_T0}, {TB2}")
        e(f"v_add_u32 v{T1}, s{S_T0}, v{T1}")
        for k in range(3):
            e(f"v_mul_f32 v{BVS[k]}, 0.5, v{BVS[k]}")
            e(f"ds_write_b32 v{T1}, v{BVS[k]} offset:{768 + 4*k}")
        e(f"v_add_f32 v{T0}, v{G0}, v{G0+1}")
        e(f"v_add_f32 v{T0}, v{T0}, v{G0+2}")
        self.wave_allreduce(T0, T2)
        e(f"s_lshl_b32 s{S_T0}, s{S_W}, 2")
        e(f"s_add_u32 s{S_T0}, s{S_T0}, {MISC}")
        e(f"v_mov_b32 v{T2}, s{S_T0}")
        e(f"ds_write_b32 v{T2}, v{T0}")
        add(wait_lds_all())
        e("s_barrier")
        e(f"v_mov_b32 v{T2}, {MISC}")
        e(f"ds_read_b128 v[28:31], v{T2}")
        e("v_add_f32 v28, v28, v29")
        e("v_add_f32 v30, v30, v31")
        e("v_add_f32 v28, v28, v30")
        e(f"v_mov_b32 v29, {fl(1e-6)}")
        e(f"v_fmac_f32 v29, {fl(1.0/768)}, v28")
        e("v_rcp_f32 v29, v29")
        e(f"v_mul_f32 v29, {fl(1.0/SG)}, v29")
        e(f"v_mov_b32 v30, {fl(1.0/SG)}")
        for k in range(3):
            e(f"v_lshlrev_b32 v{GL[k]}, 16, v{GL[k]}")
            e(f"v_mul_f32 v{GL[k]}, v{GL[k]}, v{G0+k}")
            e(f"v_fma_f32 v{GL[k]}, v{GL[k]}, v29, v30")
            e(f"ds_write_b32 v{T1}, v{GL[k]} offset:{4*k}")
        add(self.x_dma_list(0))
        e(f"v_add_u32 v{self.P2_XDV}, 64, v{self.P2_XDV}")
        add(self.x_dma_list(1))
        self.stamp("svec")

    def p2_setup(self):
        e = self.e
        LO, HI, L_ = self.P2_LO, self.P2_HI, self.P2_LANE
        a_, b_, c_, d_ = 32, 33, 34, 36
        e(f"v_and_b32 v{a_}, 31, v{L_}")
        e(f"v_and_b32 v{b_}, 7, v{a_}")
        e(f"v_bfe_u32 v{c_}, v{a_}, 4, 1")
        e(f"v_xor_b32 v{b_}, v{b_}, v{c_}")
        e(f"v_lshrrev_b32 v{c_}, 5, v{L_}")
        e(f"s_lshr_b32 s{S_T0}, s{S_W}, 1")
        e(f"s_mul_i32 s{S_T0}, s{S_T0}, {EXP}")
        e(f"s_and_b32 s{S_T1}, s{S_W}, 1")
        e(f"s_mul_i32 s{S_T2}, s{S_T1}, {4*4096}")
        e(f"s_add_u32 s{S_T2}, s{S_T2}, s{S_T0}")
        e(f"s_mul_i32 s{S_T3}, s{S_T1}, {3*4096}")
        e(f"s_sub_u32 s{S_T3}, s{S_T0}, s{S_T3}")
        e(f"v_lshlrev_b32 v{a_}, 7, v{a_}")
        for q in range(4):
            e(f"v_add_u32 v{d_}, {2*q}, v{c_}")
            e(f"v_xor_b32 v{d_}, v{d_}, v{b_}")
            e(f"v_lshl_add_u32 v{d_}, v{d_}, 4, v{a_}")
            e(f"v_add_u32 v{LO+q}, s{S_T2}, v{d_}")
            e(f"v_add_u32 v{HI+q}, s{S_T3}, v{d_}")
        e(f"v_lshlrev_b32 v{b_}, 8, v{c_}")
        e(f"v_bfe_u32 v{d_}, v{L_}, 2, 2")
        e(f"v_lshl_add_u32 v{b_}, v{d_}, 6, v{b_}")
        e(f"v_bfe_u32 v{d_}, v{L_}, 4, 1")
        e(f"v_lshl_add_u32 v{b_}, v{d_}, 5, v{b_}")
        e(f"v_and_b32 v{d_}, 3, v{L_}")
        e(f"v_lshl_add_u32 v{b_}, v{d_}, 3, v{b_}")
        e(f"v_add_u32 v{self.P2_ATR}, s{S_WRB}, v{b_}")
        e(f"s_mul_i32 s{S_T0}, s{S_W}, 1536")
        e(f"s_add_u32 s{S_T0}, s{S_T0}, {TB2}")
        e(f"v_lshl_add_u32 v{self.P2_SB}, v{c_}, 4, s{S_T0}")
        self.w2_voffset(self.P2_WVO, d_, L_)
        e(f"s_lshl_b32 s{S_T0}, s{S_W}, 3")
        e(f"v_lshrrev_b32 v{d_}, 3, v{L_}")
        e(f"v_add_u32 v{a_}, s{S_T0}, v{d_}")
        e(f"v_and_b32 v{b_}, 7, v{a_}")
        e(f"v_bfe_u32 v{c_}, v{a_}, 4, 1")
        e(f"v_xor_b32 v{b_}, v{b_}, v{c_}")
        e(f"v_and_b32 v{c_}, 7, v{L_}")
        e(f"v_xor_b32 v{b_}, v{b_}, v{c_}")
        e(f"v_lshlrev_b32 v{b_}, 4, v{b_}")
        e(f"v_lshl_add_u32 v{self.P2_EXR}, v{a_}, 7, v{b_}")
        e(f"s_lshl_b32 s{S_T5}, s{S_W}, 13")
        e(f"s_add_u32 s{S_T5}, s{S_T5}, {XST}")
        e(f"v_lshlrev_b32 v{b_}, 3, v{c_}")
        e(f"v_lshl_add_u32 v{b_}, v{d_}, 6, v{b_}")
        e(f"v_add_u32 v{self.P2_XL}, s{S_T5}, v{b_}")
        e(f"s_lshr_b32 s{S_T0}, s{S_W}, 1")
        e(f"s_add_u32 s{S_T0}, s{S_T0}, s{S_R0}")
        e(f"s_mul_i32 s{S_T0}, s{S_T0}, 224")
        e(f"s_add_u32 s{S_T0}, s{S_T0}, s{S_C0}")
        e(f"s_and_b32 s{S_T1}, s{S_W}, 1")
        e(f"s_lshl_b32 s{S_T1}, s{S_T1}, 3")
        e(f"s_add_u32 s{S_T0}, s{S_T0}, s{S_T1}")
        e(f"v_add_u32 v{a_}, s{S_T0}, v{d_}")
        e(f"v_mul_u32_u24 v{a_}, 384, v{a_}")
        e(f"v_lshl_add_u32 v{self.P2_XO}, v{c_}, 3, v{a_}")
        e(f"v_bfe_u32 v{a_}, v{L_}, 2, 3")
        e(f"v_add_u32 v{a_}, s{S_T0}, v{a_}")
        e(f"v_mul_u32_u24 v{a_}, 384, v{a_}")
        e(f"v_and_b32 v{b_}, 3, v{L_}")
        e(f"v_lshl_add_u32 v{a_}, v{b_}, 4, v{a_}")
        e(f"v_lshrrev_b32 v{b_}, 5, v{L_}")
        e(f"v_mul_u32_u24 v{b_}, 172032, v{b_}")
        e(f"v_add_u32 v{self.P2_XDV}, v{a_}, v{b_}")
        e(f"s_and_b32 s{S_T1}, s{S_W}, 1")
        e(f"s_sub_u32 s{S_MSK}, 0, s{S_T1}")
        e(f"s_mov_b32 s{S_MSK+1}, s{S_MSK}")

    def phase2(self):
        e = self.e; add = self.add
        EXR, LO, HI, BR, XO, XL, SB = self.P2_EXR, self.P2_LO, self.P2_HI, self.P2_BR, self.P2_XO, self.P2_XL, self.P2_SB
        TMP = self.P2_TMP
        D2 = (224, 240)
        NT = 42
        SB3 = (20, 28, 36)
        for kk in range(3): add(self.s_reads(kk, SB3[kk]))
        def cinit(n):
            c, i = divmod(n, 7); d = D2[n % 2]
            L = []
            for q in range(4):
                dst = f"a[{d+4*q}:{d+4*q+3}]"
                if i <= 2: L.append([I(f"ds_read_b128 {dst}, v{SB} offset:{768 + c*128 + q*32}")])
                elif i >= 4: L.append([I(f"ds_read_b128 {dst}, v{HI+q} offset:{i*4096}")])
                else:
                    L.append([I(f"v_add_u32 v{BR}, {hx(768 + c*128 + q*32 - 3*4096)}, v{SB}"),
                              I(f"v_cndmask_b32 v{BR}, v{BR}, v{HI+q}, s[{S_MSK}:{S_MSK+1}]"),
                              I(f"ds_read_b128 {dst}, v{BR} offset:{3*4096}")])
            return L
        for g_ in cinit(0): add(g_)
        add(align8())
        for kk in range(12):
            u = self.U(kk); S = SB3[kk % 3]; r = self.pool(0, kk)
            for j in range(4): e(f"v_pk_mul_f32 v[{u+2*j}:{u+2*j+1}], v[{u+2*j}:{u+2*j+1}], v[{S+2*j}:{S+2*j+1}]")
            if kk + 3 < 12: add(self.s_reads(kk + 3, S))
            for j in range(4): e(f"v_cvt_pk_bf16_f32 v{r+j}, v{u+2*j}, v{u+2*j+1}")
        L_ = self.P2_LANE
        e(f"v_bfe_u32 v{TMP}, v{L_}, 2, 2")
        e(f"v_lshlrev_b32 v{TMP}, 5, v{TMP}")
        e(f"v_and_b32 v{TMP+1}, 3, v{L_}")
        e(f"v_lshl_add_u32 v{TMP}, v{TMP+1}, 2, v{TMP}")
        e(f"v_lshrrev_b32 v{TMP+1}, 5, v{L_}")
        e(f"v_lshl_add_u32 v{TMP}, v{TMP+1}, 4, v{TMP}")
        e(f"s_mul_i32 s{S_T0}, s{S_W}, 1536")
        e(f"s_add_u32 s{S_T0}, s{S_T0}, {TB2}")
        e(f"v_add_u32 v{TMP}, s{S_T0}, v{TMP}")
        for a_ in range(6): e(f"ds_read_b32 v{self.P2_S + a_}, v{TMP} offset:{a_*128}")
        self.stamp("scale0")

        def ex_write(n, q):
            c, i = divmod(n, 7); d = D2[n % 2]
            base = (LO if i <= 2 else HI) + q
            return I(f"ds_write_b128 v{base}, a[{d+4*q}:{d+4*q+3}] offset:{i*4096}", token="xw")
        EPS = [(0, 5, 5), (4, 6, 6), (1, 6, 7), (5, 7, 8), (2, 8, 9), (6, 9, 10), (3, 10, 11)]
        rd_at = {}; va_at = {}
        seq_id = 0
        for c in range(6):
            for (t, sr_, sv) in EPS:
                job = (c, t, seq_id % 2); seq_id += 1
                rd_at.setdefault(7*c + sr_, []).append(job); va_at.setdefault(7*c + sv, []).append(job)
        def ep_reads(job, ep=None, xr=None):
            c, t, st = job
            ep = self.P2_EP[st] if ep is None else ep; xr = self.P2_X[st] if xr is None else xr
            return [I(f"ds_read_b128 v[{ep}:{ep+3}], v{EXR} offset:{t*4096}"),
                    I(f"ds_read_b128 v[{ep+4}:{ep+7}], v{EXR} offset:{EXP + t*4096}"),
                    I(f"ds_read_b64 v[{xr}:{xr+1}], v{XL} offset:{(c&1)*4096 + (t>>1)*1024 + (t&1)*512}")]
        def ep_valu(job, ep=None, xr=None):
            c, t, st = job
            ep = self.P2_EP[st] if ep is None else ep; xr = self.P2_X[st] if xr is None else xr
            fa, fb = ep, ep + 4
            L = [I(f"v_add_f32 v{fa+r}, v{fa+r}, v{fb+r}") for r in range(4)]
            L += [I(f"v_lshlrev_b32 v{fb}, 16, v{xr}"), I(f"v_and_b32 v{fb+1}, s{S_HIM}, v{xr}"),
                  I(f"v_lshlrev_b32 v{fb+2}, 16, v{xr+1}"), I(f"v_and_b32 v{fb+3}, s{S_HIM}, v{xr+1}")]
            L += [I(f"v_add_f32 v{fa+r}, v{fa+r}, v{fb+r}") for r in range(4)]
            L += [I(f"v_cvt_pk_bf16_f32 v{fb}, v{fa}, v{fa+1}"), I(f"v_cvt_pk_bf16_f32 v{fb+1}, v{fa+2}, v{fa+3}")]
            L.append([I(f"s_mov_b32 s{S_T3}, {t*172032 + c*64}"),
                      I(f"buffer_store_dwordx2 v[{fb}:{fb+1}], v{XO}, s[{SRD_OUT}:{SRD_OUT+3}], s{S_T3} offen")])
            return L

        dma_q = []
        SCALE_AT = {1: (0, 1), 2: (2, 3), 3: (4, 5), 4: (6, 7), 5: (8, 9), 6: (10, 11)}
        for n in range(NT):
            c, i = divmod(n, 7)
            G = [[] for _ in range(12)]
            nxt = c + 1 < 6
            jobs_r = rd_at.get(n, []); jobs_v = va_at.get(n, [])
            RD = [[] for _ in range(12)]; WR = [[] for _ in range(12)]; VA = [[] for _ in range(12)]; VM = [[] for _ in range(12)]
            for job in jobs_r:
                if job[1] == 0: RD[0].append(wait_vm_token(f"xs_{job[0]}"))
                RD[0] += ep_reads(job)
            if n >= 1:
                for q, gp in enumerate((1, 3, 5, 7)): WR[gp].append(ex_write(n - 1, q))
            if n + 1 < NT:
                ci = cinit(n + 1)
                for q, gp in enumerate((3, 5, 7, 9)): RD[gp] += ci[q]
            if nxt and i == 0:
                RD[0].insert(0, wait_vm_token(f"w2_{c+1}"))
                rr = [x for kk in range(12) for x in self.a2_reads(c + 1, kk)]
                for gp, cnt in ((0, 3), (1, 3), (3, 3), (5, 3), (7, 3), (9, 3), (10, 3), (11, 3)):
                    RD[gp] += rr[:cnt]; rr = rr[cnt:]
                assert not rr
            if nxt and i in SCALE_AT:
                ka, kb = SCALE_AT[i]
                sa, sb = self.a2_scale(c + 1, ka), self.a2_scale(c + 1, kb)
                for gp, ops in ((0, sa[0:4]), (1, sa[4:9]), (2, sa[9:15]), (3, sa[15:20]),
                                (7, sb[0:3]), (8, sb[3:9]), (9, sb[9:13]), (10, sb[13:18]), (11, sb[18:20])): VA[gp] += ops
            for job in jobs_v:
                ev = ep_valu(job)
                for gp, ops in ((4, ev[0:6]), (5, ev[6:10]), (6, ev[10:15])): VA[gp] += ops
            if nxt and i == 1 and c + 2 < 6:
                dma_q = self.w2_dma_list(c + 2, self.P2_WVO)
                dma_q[0] = [wait_lds_token(f"a2_{c+1}"), I(f"v_add_u32 v{self.P2_WVO}, 64, v{self.P2_WVO}")] + dma_q[0]
            if i in (1, 2, 3):
                for gp in (2, 4, 8, 10):
                    if dma_q: VM[gp].append(dma_q.pop(0))
            if i == 5 and 1 <= c and c + 1 < 6:
                xl = self.x_dma_list(c + 1)
                VM[2].append(I(f"v_add_u32 v{self.P2_XDV}, 64, v{self.P2_XDV}"))
                VM[2].append([xl[0], xl[1]]); VM[4].append(xl[2]); VM[8].append(xl[3]); VM[10].append(xl[4])
            for k_ in range(12): G[k_] = RD[k_] + WR[k_] + VM[k_] + VA[k_]
            def flat(x):
                for y in x:
                    if isinstance(y, (list, tuple)): yield from flat(y)
                    else: yield y
            def drop(pred):
                for k_ in range(12): G[k_] = [y for y in flat(G[k_]) if not pred(y)]
            if self.skip("nostore"): drop(lambda y: y.kind == "vm_store")
            if self.skip("nodma2"): drop(lambda y: y.kind == "dma")
            if self.skip("noxw"): drop(lambda y: y.kind == "ds_write")
            if self.skip("novalu2"): drop(lambda y: y.is_valu())
            if self.skip("nodsr2"): drop(lambda y: y.kind == "ds_read")
            if self.skip("nopool"): drop(lambda y: y.kind == "ds_read" and "_tr_" in y.op)
            d = D2[n % 2]
            for kk in range(12):
                u = 7 * (kk >> 1) + i
                hb = self.hreg(u)[4*(kk & 1):4*(kk & 1)+4]
                a_ = self.pool(c, kk)
                e(f"v_mfma_f32_32x32x16_bf16 a[{d}:{d+15}], v[{a_}:{a_+3}], {hb}, a[{d}:{d+15}]")
                add(G[kk])
            add(wait_lds_token("xw"))
            if not self.skip("nobar2"): e("s_barrier")
        assert not dma_q
        self.stamp("p2main")
        for q in range(4): add(ex_write(NT - 1, q))
        left_v = [j for n in range(NT, NT + 6) for j in va_at.get(n, [])]
        left_r = [j for n in range(NT, NT + 6) for j in rd_at.get(n, [])]
        P = self.P2_POOL
        regs = {}
        early = [j for j in left_r if j[1] in (5, 2)]; late = [j for j in left_r if j[1] in (6, 3)]
        for k, j in enumerate(early + late): regs[j] = (P + 12 * k, P + 12 * k + 8)
        for j in early: add(ep_reads(j, *regs[j]))
        for j in left_v:
            if j not in left_r: add(ep_valu(j))
        for j in early: add(ep_valu(j, *regs[j]))
        add(wait_lds_token("xw"))
        e("s_barrier")
        for j in late: add(ep_reads(j, *regs[j]))
        for j in late: add(ep_valu(j, *regs[j]))


    def dump_h(self):
        e = self.e
        e(f"s_lshl_b32 s{S_T0}, s2, 2")
        e(f"s_add_u32 s{S_T0}, s{S_T0}, s{S_W}")
        e(f"s_mul_i32 s{S_T0}, s{S_T0}, {336*256}")
        e(f"s_add_u32 s{S_T0}, s{S_T0}, {WS_DBG}")
        e(f"v_lshl_add_u32 v1, v0, 2, s{S_T0}")
        for u in range(42):
            h = self.hreg(u)
            for i in range(8):
                e(f"global_store_dword v1, {h[i]}, s[{S_WS}:{S_WS+1}] offset:{i*256}")
            e("v_add_u32 v1, 2048, v1")
            self.add(wait_vm_all())

    def w_voffsets_w1(self, reg, tmp):
        e = self.e
        e(f"v_lshrrev_b32 v{reg}, 2, v0")
        e(f"v_mul_u32_u24 v{reg}, 1536, v{reg}")
        e(f"v_and_b32 v{tmp}, 3, v0")
        e(f"v_lshl_add_u32 v{reg}, v{tmp}, 4, v{reg}")
        e(f"s_mul_i32 s{S_T0}, s{S_W}, 384")
        e(f"v_add_u32 v{reg}, s{S_T0}, v{reg}")
    def w1_dma_list(self, m, reg):
        L = []
        for q in range(12):
            grp = []
            if q % 4 == 0: grp.append(I(f"s_add_u32 m0, s{S_WRB}, {(q//4)*4096}"))
            grp.append(I(f"buffer_load_dwordx4 v{reg}, s[{SRD_W1}:{SRD_W1+3}], s{S_W1T+q} offen offset:{(q&3)*1024} lds", token=f"w1_{m}"))
            L.append(grp)
        return L
    def w1_dma(self, m, reg):
        for g in self.w1_dma_list(m, reg): self.add(g)

    def dump_lds(self, nbytes, per_wg):
        e = self.e
        e(f"s_mul_i32 s{S_T0}, s2, {per_wg}")
        e(f"s_add_u32 s{S_T0}, s{S_T0}, {WS_DBG}")
        e(f"s_lshl_b32 s{S_T1}, s{S_W}, 10")
        e(f"v_lshl_add_u32 v1, v0, 4, s{S_T1}")
        e(f"v_add_u32 v2, s{S_T0}, v1")
        for k in range(0, nbytes, 4096):
            e(f"ds_read_b128 v[4:7], v1")
            e(f"global_store_dwordx4 v2, v[4:7], s[{S_WS}:{S_WS+1}]")
            e("v_add_u32 v1, 4096, v1")
            e("v_add_u32 v2, 4096, v2")
            e("s_nop 1")
        self.add(wait_vm_all())

    def finish(self):
        e = self.e
        self.flush_stamps()
        e("L_end:", nocheck=True)
        e("s_endpgm")

    def build(self):
        self.prologue()
        self.stamp("start")
        self.phase0()
        if self.stage == 0:
            self.add(wait_vm_all())
            self.dump_lds(86016, 86016)
            return self.finish()
        self.flag_check()
        self.bias_finish(1)
        self.p1_setup()
        self.stamp("p1start")
        self.phase1()
        self.stamp("p1")
        if self.stage == 1:
            self.add(wait_vm_all())
            self.dump_h()
            return self.finish()
        self.grn_barrier()
        self.phase2()
        self.stamp("p2")
        self.finish()

    def flag_check(self):
        e = self.e
        e(f"v_readfirstlane_b32 s{S_T0}, v12")
        e(f"s_cmp_ge_u32 s{S_T0}, {NREP}")
        e("s_cbranch_scc1 L_flagok", nocheck=True)
        self.add(cond_begin())
        e("v_mov_b32 v11, 0")
        e(f"s_mov_b32 s{S_T4}, 0")
        e("L_flag:", nocheck=True)
        e("s_sleep 2")
        e(f"s_add_u32 s{S_T4}, s{S_T4}, 1")
        e(f"s_cmp_ge_u32 s{S_T4}, 0x40000")
        e("s_cbranch_scc1 L_flagok", nocheck=True)
        e(f"global_load_dword v12, v11, s[{S_DBG}:{S_DBG+1}] sc0 sc1", maybe=True)
        e("s_waitcnt vmcnt(0)")
        e(f"v_readfirstlane_b32 s{S_T0}, v12")
        e(f"s_cmp_ge_u32 s{S_T0}, {NREP}")
        e("s_cbranch_scc0 L_flag", nocheck=True)
        self.add(cond_end())
        e("L_flagok:", nocheck=True)

def wrap(body, lds=LDS_TOTAL):
    return f"""; fused dwconv3x3 + LayerNorm + GEMM + GELU + GRN + GEMM + residual, one persistent workgroup per CU
; @launch grid=({NWG},1,1) block=(256,1,1) lds={lds}
.amdgcn_target "amdgcn-amd-amdhsa--gfx950"
.text
.globl {KNAME}
.p2align 8
.type {KNAME},@function
{KNAME}:
{body}
.section .rodata,"a"
.p2align 6
.amdhsa_kernel {KNAME}
  .amdhsa_next_free_vgpr 512
  .amdhsa_next_free_sgpr 102
  .amdhsa_accum_offset 256
  .amdhsa_group_segment_fixed_size 0
  .amdhsa_kernarg_size 72
  .amdhsa_user_sgpr_count 2
  .amdhsa_user_sgpr_kernarg_segment_ptr 1
  .amdhsa_system_sgpr_workgroup_id_x 1
  .amdhsa_float_denorm_mode_32 3
.end_amdhsa_kernel
"""

def generate(stage=99, timers=False, verbose=False, exp=()):
    g = Gen(stage, timers, exp)
    g.build()
    ins, info = finalize(g.p.ins, verbose)
    return wrap(render(ins)), info

if __name__ == "__main__":
    import argparse
    ap = argparse.ArgumentParser()
    ap.add_argument("--stage", type=int, default=99)
    ap.add_argument("--timers", action="store_true")
    ap.add_argument("-o", default="out.s")
    ap.add_argument("-v", action="store_true")
    A = ap.parse_args()
    txt, info = generate(A.stage, A.timers, A.v)
    open(A.o, "w").write(txt)
    print(info)
```

```python
import re
LAX = False

def v(n): return f"v{n}"
def a(n): return f"a{n}"
def s(n): return f"s{n}"
def vr(n, c): return f"v[{n}:{n+c-1}]" if c > 1 else f"v{n}"
def ar(n, c): return f"a[{n}:{n+c-1}]" if c > 1 else f"a{n}"
def sr(n, c): return f"s[{n}:{n+c-1}]" if c > 1 else f"s{n}"

class R:
    def __init__(self, kind, base, cnt=1):
        self.kind, self.base, self.cnt = kind, base, cnt
    def __str__(self):
        return f"{self.kind}[{self.base}:{self.base+self.cnt-1}]" if self.cnt > 1 else f"{self.kind}{self.base}"
    def __getitem__(self, i):
        if isinstance(i, slice):
            st = i.start or 0; en = i.stop if i.stop is not None else self.cnt
            assert 0 <= st < en <= self.cnt
            return R(self.kind, self.base + st, en - st)
        assert 0 <= i < self.cnt, (i, self.cnt)
        return R(self.kind, self.base + i, 1)
    def regs(self): return {f"{self.kind}{self.base+i}" for i in range(self.cnt)}

_REG = re.compile(r"^-?\|?(?:abs\()?([vas])(?:(\d+)|\[(\d+):(\d+)\])\)?\|?$")
def parse_reg(tok):
    tok = tok.strip()
    if tok in ("vcc", "exec", "m0", "scc"):
        if tok == "vcc": return {"vcc"}
        return {tok}
    if tok in ("vcc_lo", "vcc_hi"): return {"vcc"}
    if tok in ("exec_lo", "exec_hi"): return {"exec"}
    m = _REG.match(tok)
    if not m: return set()
    k = m.group(1)
    if m.group(2) is not None: return {f"{k}{int(m.group(2))}"}
    return {f"{k}{i}" for i in range(int(m.group(3)), int(m.group(4)) + 1)}

TRANS = ("v_exp_f32", "v_log_f32", "v_rcp_f32", "v_rsq_f32", "v_sqrt_f32", "v_sin_f32", "v_cos_f32")

class Ins:
    __slots__ = ("text", "op", "ops", "defs", "uses", "kind", "meta", "passes")
    def __init__(self, text, **meta):
        self.text = text.strip()
        self.meta = meta
        self.defs = set(); self.uses = set(); self.kind = "other"; self.passes = 0
        t = self.text
        if t.endswith(":"):
            self.kind = "label"; self.op = t; self.ops = []; return
        if t.startswith("."):
            self.kind = "directive"; self.op = t; self.ops = []; return
        if t.startswith(";"):
            self.kind = "comment"; self.op = t; self.ops = []; return
        parts = t.split(None, 1)
        self.op = op = parts[0]
        rest = parts[1] if len(parts) > 1 else ""
        rest = rest.split(";")[0]
        ops = []; cur = ""; depth = 0
        for ch in rest:
            if ch == "[": depth += 1
            if ch == "]": depth -= 1
            if ch == "," and depth == 0: ops.append(cur.strip()); cur = ""
            else: cur += ch
        if cur.strip(): ops.append(cur.strip())
        mods = ""
        if ops:
            sp = ops[-1].split(None, 1)
            if len(sp) > 1 and not sp[0].endswith(":"):
                ops[-1] = sp[0]; mods = sp[1]
        self.ops = ops
        self.meta.setdefault("mods", mods)
        P = [parse_reg(o) for o in ops]
        base = op.replace("_e32", "").replace("_e64", "").replace("_dpp", "").replace("_sdwa", "")
        U = lambda idx: set().union(*[P[i] for i in idx if i < len(P)]) if idx else set()
        if op.startswith("v_mfma"):
            self.kind = "mfma"; self.defs = P[0]; self.uses = U([1, 2, 3])
            self.passes = 8 if "32x32" in op else 4
            self.meta["srcC"] = P[3]; self.meta["srcAB"] = U([1, 2])
        elif op.startswith("v_cmp"):
            self.kind = "valu"; self.defs = P[0]; self.uses = U([1, 2]) | {"exec"}
        elif op.startswith("v_readfirstlane") or op.startswith("v_readlane"):
            self.kind = "valu"; self.defs = P[0]; self.uses = U([1, 2]); self.meta["readlane"] = True
        elif op.startswith("v_permlane"):
            self.kind = "valu"; self.defs = U([0, 1]); self.uses = U([0, 1]); self.meta["permlane"] = True
        elif op.startswith("v_"):
            self.kind = "valu"
            self.defs = set(P[0]); self.uses = U(range(1, len(P)))
            if base in TRANS: self.kind = "trans"
            if op.startswith("v_pk_"): self.meta["pk"] = True
            if base in ("v_fmac_f32", "v_dot2c_f32_bf16"): self.uses |= P[0]
            if "_dpp" in op or "row_" in mods or "quad_perm" in mods:
                self.meta["dpp"] = True; self.uses |= P[0]
                self.meta["dppsrc"] = P[1]
            if base in ("v_add_co_u32", "v_addc_co_u32", "v_sub_co_u32"):
                self.defs = U([0, 1]); self.uses = U(range(2, len(P)))
            if base == "v_cndmask_b32" and len(P) == 3: self.uses |= {"vcc"}
        elif op.startswith("ds_read") or op.startswith("ds_bpermute") or op.startswith("ds_swizzle"):
            self.kind = "ds_read"; self.defs = P[0]; self.uses = U(range(1, len(P)))
            if "d16" in op: self.uses |= P[0]
        elif op.startswith("ds_write") or op.startswith("ds_add"):
            self.kind = "ds_write"; self.uses = U(range(len(P)))
        elif op.startswith("buffer_load"):
            if " lds" in (" " + mods):
                self.kind = "dma"; self.uses = U(range(len(P))) | {"m0"}
            else:
                self.kind = "vm_load"; self.defs = P[0]; self.uses = U(range(1, len(P)))
        elif op.startswith("buffer_store") or op.startswith("buffer_atomic"):
            self.kind = "vm_store"; self.uses = U(range(len(P)))
            self.meta["data"] = P[0]
        elif op.startswith("global_load_lds"):
            self.kind = "dma"; self.uses = U(range(len(P))) | {"m0"}
        elif op.startswith("global_load"):
            self.kind = "vm_load"; self.defs = P[0]; self.uses = U(range(1, len(P)))
        elif op.startswith("global_store") or op.startswith("global_atomic"):
            self.kind = "vm_store"; self.uses = U(range(len(P)))
            self.meta["data"] = P[1]
        elif op.startswith("s_load") or op in ("s_memtime", "s_memrealtime"):
            self.kind = "smem"; self.defs = P[0]; self.uses = U(range(1, len(P)))
        elif op == "s_waitcnt": self.kind = "waitcnt"
        elif op == "s_barrier": self.kind = "barrier"
        elif op == "s_nop": self.kind = "nop"; self.meta["n"] = int(ops[0]) + 1
        elif op in ("s_endpgm", "s_sleep", "s_setprio"): self.kind = "sopp"
        elif op.startswith("s_cbranch") or op == "s_branch":
            self.kind = "branch"
            if "vcc" in op: self.uses = {"vcc"}
            if "exec" in op: self.uses = {"exec"}
            if "scc" in op: self.uses = {"scc"}
        elif op.startswith("s_cmp") or op.startswith("s_bitcmp"):
            self.kind = "salu"; self.defs = {"scc"}; self.uses = U(range(len(P)))
        elif op.startswith("s_"):
            self.kind = "salu"; self.defs = set(P[0]) if P else set(); self.uses = U(range(1, len(P)))
            if "saveexec" in op: self.defs |= {"exec"}; self.uses |= {"exec"}
            if op in ("s_cselect_b32", "s_cselect_b64", "s_addc_u32"): self.uses |= {"scc"}
            if op not in ("s_mov_b32", "s_mov_b64", "s_getreg_b32", "s_cselect_b32", "s_cselect_b64", "s_mul_i32", "s_mul_hi_u32", "s_movk_i32", "s_getpc_b64"):
                self.defs |= {"scc"}
        else:
            raise ValueError("unknown instruction: " + text)

    def is_valu(self): return self.kind in ("valu", "trans")
    def is_real(self): return self.kind not in ("label", "directive", "comment", "pseudo")
    def size(self):
        if not self.is_real(): return 0
        op = self.op; ops = self.ops
        if self.kind in ("mfma", "ds_read", "ds_write", "dma", "vm_load", "vm_store", "smem"): return 8
        if self.kind in ("waitcnt", "barrier", "nop", "sopp", "branch"): return 4
        lit = any(is_literal(o) for o in ops)
        if self.kind == "salu":
            if op in ("s_movk_i32", "s_getreg_b32"): return 4
            return 8 if lit else 4
        if op.endswith("_e64") or op.endswith("_dpp") or op.endswith("_sdwa") or self.meta.get("dpp"): return 8
        base = op.replace("_e32", "")
        if base in VOP3_ONLY or op.startswith("v_pk_") or op.startswith("v_accvgpr_write") or op.startswith("v_accvgpr_read"): return 8
        if base in ("v_fmaak_f32", "v_fmamk_f32"): return 8
        if op.startswith("v_cmp"):
            if ops[0] != "vcc": return 8
            if ops[2][0] != "v": return 8
            if any(m in self.text for m in ("-v", "|v")): return 8
            return 8 if lit else 4
        if base == "v_cndmask_b32":
            if len(ops) == 4 and ops[3] != "vcc": return 8
            return 8 if lit else 4
        if base in VOP1:
            if ops[1].startswith("-") or ops[1].startswith("|"): return 8
            return 8 if lit else 4
        if base in VOP2:
            if any(o.startswith("-v") or o.startswith("|") or o.startswith("-s") for o in ops): return 8
            if not ops[2].startswith("v"): return 8
            if self.meta.get("mods"): return 8
            return 8 if lit else 4
        raise ValueError("size unknown: " + self.text)

VOP1 = {"v_mov_b32", "v_exp_f32", "v_rcp_f32", "v_rsq_f32", "v_sqrt_f32", "v_log_f32", "v_cvt_f32_u32", "v_cvt_u32_f32",
        "v_cvt_f32_i32", "v_readfirstlane_b32", "v_permlane32_swap_b32", "v_permlane16_swap_b32", "v_not_b32", "v_cvt_f32_bf16", "v_accvgpr_mov_b32"}
VOP2 = {"v_add_f32", "v_sub_f32", "v_subrev_f32", "v_mul_f32", "v_fmac_f32", "v_add_u32", "v_sub_u32", "v_subrev_u32", "v_lshlrev_b32",
        "v_lshrrev_b32", "v_ashrrev_i32", "v_and_b32", "v_or_b32", "v_xor_b32", "v_mul_u32_u24", "v_min_u32", "v_max_u32", "v_min_f32", "v_max_f32"}
VOP3_ONLY = {"v_fma_f32", "v_cvt_pk_bf16_f32", "v_lshl_add_u32", "v_add_lshl_u32", "v_lshl_or_b32", "v_and_or_b32", "v_or3_b32", "v_add3_u32",
             "v_bfe_u32", "v_mad_u32_u24", "v_mul_lo_u32", "v_mul_hi_u32", "v_xad_u32", "v_perm_b32", "v_readlane_b32", "v_writelane_b32", "v_med3_f32", "v_bfi_b32"}

def is_literal(o):
    o = o.strip()
    if o in ("0.5", "-0.5", "1.0", "-1.0", "2.0", "-2.0", "4.0", "-4.0"): return False
    if re.match(r"^-?(0x[0-9a-fA-F]+|\d+)$", o):
        x = int(o, 0)
        return not (-16 <= x <= 64)
    if re.match(r"^-?\d+\.\d+(e-?\d+)?$", o): return True
    if o.startswith("("): return True
    return False

class Pseudo(Ins):
    def __init__(self, what, **meta):
        self.text = f"; <{what}>"; self.op = what; self.ops = []; self.defs = set(); self.uses = set()
        self.kind = "pseudo"; self.meta = meta; self.passes = 0

def need(*regs):
    u = set()
    for r in regs: u |= (r.regs() if isinstance(r, R) else parse_reg(str(r)))
    p = Pseudo("need"); p.uses = u
    return p
def wait_lds_all(): return Pseudo("wait_lgkm0")
def wait_vm_token(tok): return Pseudo("wait_vm", token=tok)
def wait_lds_token(tok): return Pseudo("wait_lds", token=tok)
def wait_vm_all(): return Pseudo("wait_vm0")
def align8(): return Pseudo("align8")
def cond_begin(): return Pseudo("cond_begin")
def cond_end(): return Pseudo("cond_end")

class Prog:
    def __init__(self): self.ins = []
    def __call__(self, text, **meta):
        for line in text.split("\n"):
            if line.strip(): self.ins.append(Ins(line, **meta))
    def add(self, x):
        if isinstance(x, (list, tuple)):
            for y in x: self.add(y)
        elif isinstance(x, str): self(x)
        else: self.ins.append(x)

def I(text, **meta): return Ins(text, **meta)

def insert_waits(ins):
    out = []
    lq = []
    vq = []
    def emit_wait(lg=None, vm=None):
        parts = []
        if vm is not None: parts.append(f"vmcnt({min(vm,63)})")
        if lg is not None: parts.append(f"lgkmcnt({min(lg,15)})")
        out.append(Ins("s_waitcnt " + " ".join(parts), auto=True))
    def trim(q, n):
        cnt = 0; keep = len(q)
        for i in range(len(q) - 1, -1, -1):
            if not q[i]["maybe"]:
                if cnt == n: break
                cnt += 1
            keep = i
        if n == 0: keep = len(q)
        del q[:keep]
    def after(q, idx):
        return sum(1 for e_ in q[idx + 1:] if not e_["maybe"])
    snap = []
    for x in ins:
        if x.kind == "pseudo" and x.op == "cond_begin":
            snap.append((list(lq), list(vq))); out.append(x); continue
        if x.kind == "pseudo" and x.op == "cond_end":
            l0, v0 = snap.pop()
            for q0, q in ((l0, lq), (v0, vq)):
                new = [dict(e_, maybe=True) for e_ in q if not any(e_ is o for o in q0)]
                q[:] = q0 + new
            out.append(x); continue
        touched = x.uses | x.defs
        lg = None; vm = None
        if x.kind == "pseudo":
            if x.op == "wait_lgkm0":
                if lq: lg = 0
            elif x.op == "wait_vm0":
                if vq: vm = 0
            elif x.op == "wait_vm":
                idx = [i for i, e in enumerate(vq) if e["token"] == x.meta["token"]]
                if idx: vm = after(vq, idx[-1])
            elif x.op == "wait_lds":
                idx = [i for i, e in enumerate(lq) if e["token"] == x.meta["token"]]
                if idx:
                    lg = after(lq, idx[-1])
                    if any(e["smem"] for e in lq): lg = 0
        if touched:
            idx = [i for i, e in enumerate(lq) if e["defs"] & touched]
            if idx:
                n = after(lq, idx[-1])
                if any(e["smem"] for e in lq): n = 0
                lg = n if lg is None else min(lg, n)
            idx = [i for i, e in enumerate(vq) if e["defs"] & touched]
            if idx:
                n = after(vq, idx[-1])
                vm = n if vm is None else min(vm, n)
        if lg is not None or vm is not None:
            emit_wait(lg, vm)
            if lg is not None: trim(lq, min(lg, 15))
            if vm is not None: trim(vq, min(vm, 63))
        if x.kind == "waitcnt":
            m = re.search(r"lgkmcnt\((\d+)\)", x.text)
            if m: trim(lq, int(m.group(1)))
            m = re.search(r"vmcnt\((\d+)\)", x.text)
            if m: trim(vq, int(m.group(1)))
        if x.kind in ("label", "branch") and not x.meta.get("nocheck"):
            pend = [e for e in lq + vq if e["defs"] and not e.get("loose")]
            assert not pend, f"pending loads at {x.text}: {[e['ins'] for e in pend]}"
        if x.kind in ("ds_read", "ds_write"):
            lq.append(dict(defs=set(x.defs), token=x.meta.get("token"), smem=False, ins=x.text, maybe=bool(x.meta.get("maybe"))))
        elif x.kind == "smem":
            lq.append(dict(defs=set(x.defs), token=x.meta.get("token"), smem=True, ins=x.text, maybe=False))
        elif x.kind in ("vm_load", "vm_store", "dma"):
            vq.append(dict(defs=set(x.defs), token=x.meta.get("token"), smem=False, ins=x.text, maybe=bool(x.meta.get("maybe")), loose=x.meta.get("loose")))
            if len(vq) > 63:
                assert LAX, "vmcnt overflow at " + x.text
                vq.pop(0)
        out.append(x)
    return out

def fix_hazards(ins, verbose=False):
    out = []
    hist = []
    pos = 0
    nins = 0
    def isv(r): return r[0] in "va" and r[1:].isdigit()
    def iss(r): return (r[0] == "s" and r[1:].isdigit()) or r == "vcc"
    MF_VALU = {4: 8, 8: 12}; MF_AB = {4: 8, 8: 12}; MF_COVER = {4: 6, 8: 10}; MF_CWAR = {4: 3, 8: 7}
    for x in ins:
        if not x.is_real():
            out.append(x); continue
        need_ws = 0; why = None
        for (p, ppos) in reversed(hist):
            dist = pos - ppos - 1 if p.kind != "nop" else None
            if dist is None: continue
            if dist >= 20: break
            req = 0
            pv = {r for r in p.defs if isv(r)}
            ps = {r for r in p.defs if iss(r)}
            if p.is_valu():
                if x.kind == "mfma" and pv & x.uses: req = max(req, 2)
                if x.meta.get("dpp") and pv & x.uses: req = max(req, 2)
                if x.meta.get("permlane") and pv & x.uses: req = max(req, 2)
                if x.meta.get("readlane") and pv & x.uses: req = max(req, 1)
                if p.kind == "trans" and x.is_valu() and x.kind != "trans" and pv & x.uses: req = max(req, 1)
                if p.kind == "trans" and x.kind == "trans" and pv & x.uses: req = max(req, 1)
                if ps and x.is_valu() and ps & x.uses: req = max(req, 4 if x.meta.get("readlane") else 2)
                if ps and x.kind in ("vm_load", "vm_store", "dma") and ps & x.uses: req = max(req, 5)
                if ps and x.kind in ("salu", "branch", "smem") and ps & x.uses: req = max(req, 2)
            if p.kind == "mfma":
                D = p.defs
                if x.kind == "mfma":
                    if D & x.meta["srcAB"]: req = max(req, MF_AB[p.passes])
                    c = x.meta["srcC"]
                    if D & c and not (c == D and x.passes == p.passes): req = max(req, MF_COVER[p.passes])
                    if D & x.defs and x.defs != D: req = max(req, MF_COVER[p.passes])
                elif x.is_valu() or x.kind in ("ds_read", "ds_write", "vm_load", "vm_store", "dma"):
                    if D & (x.uses | x.defs): req = max(req, MF_VALU[p.passes])
                if x.is_valu() and (p.meta["srcC"] & x.defs): req = max(req, MF_CWAR[p.passes])
            if p.kind == "vm_store" and ("x3" in p.op or "x4" in p.op) and x.is_valu() and (p.meta.get("data", set()) & x.defs):
                req = max(req, 2)
            if p.kind == "ds_write" and ("b128" in p.op or "b96" in p.op) and x.is_valu() and (p.uses & x.defs):
                req = max(req, 1)
            if p.kind == "salu" and "m0" in p.defs and x.kind == "dma": req = max(req, 1)
            if p.kind == "salu" and "exec" in p.defs and (x.meta.get("dpp") or x.meta.get("permlane")): req = max(req, 2)
            if req - dist > need_ws: need_ws = req - dist; why = p
        while need_ws > 0:
            n = min(need_ws, 16)
            nop = Ins(f"s_nop {n-1}", auto=True)
            out.append(nop); hist.append((nop, pos)); pos += n; need_ws -= n; nins += 1
            if verbose: print("nop", n, "before", x.text, "because", why.text)
        out.append(x)
        hist.append((x, pos))
        pos += x.meta["n"] if x.kind == "nop" else 1
        if len(hist) > 64: hist = hist[-40:]
    return out, nins

def fix_align(ins):
    out = []; off = 0
    for x in ins:
        if x.kind == "directive" and x.text.startswith(".p2align"):
            al = 1 << int(x.text.split()[1]); off = (off + al - 1) // al * al
        if x.kind == "pseudo" and x.op == "align8" and off % 8:
            done = False
            for k in range(len(out) - 1, max(-1, len(out) - 40), -1):
                y = out[k]
                if y.kind in ("label", "directive"): break
                if y.kind == "pseudo" and y.op == "align8": break
                if y.is_valu() and y.size() == 4 and not y.meta.get("permlane") and not y.meta.get("readlane") and not y.op.startswith("v_accvgpr"):
                    t = y.text.split(None, 1)
                    out[k] = Ins(t[0].replace("_e32", "") + "_e64 " + t[1], **{kk: vv for kk, vv in y.meta.items() if kk != "mods"})
                    done = True; break
            if not done: out.append(Ins("s_nop 0", auto=True))
            off += 4
        out.append(x); off += x.size()
    return out, off

def render(ins):
    L = []
    for x in ins:
        if x.kind == "pseudo": continue
        L.append(x.text if x.kind in ("label", "directive") else "  " + x.text)
    return "\n".join(L) + "\n"

def finalize(prog_ins, verbose=False):
    a_ = insert_waits(prog_ins)
    b_, nn = fix_hazards(a_, verbose)
    c_, size = fix_align(b_)
    d_, nn2 = fix_hazards(c_)
    assert nn2 == 0
    return c_, dict(nops=nn, size=size, n=sum(1 for x in c_ if x.is_real()))
```

```python
import sys, struct, math
from asmlib import *

KNAME = "standalone__modern_conv_block_slak__vision_kernel"
NWG = 224
H = W = 224; C = 192; HID = 768
XBYTES = H * W * C * 2
WBYTES = C * HID * 2

KAPPA = 2.0 * math.sqrt(2.0 / math.pi) * math.log2(math.e)
BETA = KAPPA * 0.044715
SG = BETA ** (1.0 / 3.0)
APRIME = KAPPA / SG
def f2u(x): return struct.unpack("<I", struct.pack("<f", x))[0]
def hx(x): return "0x%08x" % (x & 0xffffffff)
def fl(x): return hx(f2u(x))

LDS_TOTAL = 163840
PLANE = 36864; ROWP = 2304
LN_T = 12288
WRING = 110592; WR_W = 12288
TBL = 159744
STAB = TBL; BTAB = TBL + 3072; MISC = TBL + 3072 + 768
EXP = 28672
TB2 = 90112
XST = 2 * EXP

WS_PAGE = 4096
WS_BIAS = 3072
WS_CNT = 3968
WS_DBG = 1 << 20
NREP = 8

S_X, S_DW, S_W1, S_W2, S_G, S_B, S_OUT, S_DBG, S_WS = 4, 6, 8, 10, 12, 14, 16, 18, 20
SRD_X, SRD_W1, SRD_W2, SRD_OUT, SRD_DW = 24, 28, 32, 36, 40
S_W = 44; S_R0 = 45; S_C0 = 46; S_T0 = 47; S_T1 = 48; S_T2 = 49
S_NEGA = 50
S_HIM = 52
S_128 = 53; S_256 = 54
S_SOFF = 55; S_WRB = 56
S_T3 = 57; S_EX = 58
S_REP = 60
S_T4 = 61; S_T5 = 62
S_MSK = 64
S_TM = 66
S_STAMP = 70
STAMP_REGS = [0, 1, 3, 22, 23, 63, 66, 67, 68, 69, 100, 101]
S_W1T, S_W2T, S_XT = 72, 84, 96
S_MSK1 = 58

class Gen:
    def __init__(self, stage=99, timers=False, exp=()):
        self.exp = set(exp)
        self.p = Prog(); self.stage = stage; self.timers = timers; self.nstamp = 0

    def e(self, text, **m): self.p(text, **m)
    def add(self, x): self.p.add(x)

    def stamp(self, name):
        if not self.timers: return
        if self.skip("p0t") and name in ("atomdone", "barrier", "svec", "scale0", "p2main", "p1", "p2"): return
        if "both" in self.exp:
            if name not in ("start", "conv", "p1start", "p1", "scale0", "p2"): return
            for op in ("s_memtime", "s_memrealtime"):
                k = self.nstamp; self.nstamp += 1
                self.stamp_names = getattr(self, "stamp_names", []) + [name + op[-8:]]
                self.e(f"{op} s[{S_STAMP}:{S_STAMP+1}]")
                self.add(wait_lds_all())
                self.e(f"s_mov_b32 s{STAMP_REGS[k]}, s{S_STAMP}")
            return
        k = self.nstamp; self.nstamp += 1
        self.stamp_names = getattr(self, "stamp_names", []) + [name]
        self.e(f"{'s_memrealtime' if 'rt' in self.exp else 's_memtime'} s[{S_STAMP}:{S_STAMP+1}]")
        self.add(wait_lds_all())
        self.e(f"s_mov_b32 s{STAMP_REGS[k]}, s{S_STAMP}")

    def flush_stamps(self):
        if not self.timers: return
        e = self.e
        e(f"s_lshl_b32 s{S_T4}, s2, 2")
        e(f"s_add_u32 s{S_T4}, s{S_T4}, s{S_W}")
        e(f"s_lshl_b32 s{S_T4}, s{S_T4}, 7")
        e(f"s_add_u32 s{S_T4}, s{S_T4}, {WS_DBG - 262144}")
        e(f"v_mov_b32 v1, s{S_T4}")
        for k in range(self.nstamp):
            e(f"v_mov_b32 v0, s{STAMP_REGS[k]}")
            e(f"global_store_dword v1, v0, s[{S_WS}:{S_WS+1}] offset:{4*k}")
            e("s_nop 1")
        self.add(wait_vm_all())

    def prologue(self):
        e = self.e
        e(f"s_cmp_ge_u32 s2, {NWG}")
        e("s_cbranch_scc1 L_end")
        e(f"s_load_dwordx4 s[{S_X}:{S_X+3}], s[0:1], 0")
        e(f"s_load_dwordx4 s[{S_W1}:{S_W1+3}], s[0:1], 16")
        e(f"s_load_dwordx4 s[{S_G}:{S_G+3}], s[0:1], 32")
        e(f"s_load_dwordx4 s[{S_OUT}:{S_OUT+3}], s[0:1], 48")
        e(f"s_load_dwordx2 s[{S_WS}:{S_WS+1}], s[0:1], 64")
        if not self.skip("nopf"):
            e("s_getpc_b64 s[68:69]")
            e("L_pc:", nocheck=True)
            e("s_lshr_b32 s66, s2, 3")
            e("s_lshl_b32 s66, s66, 12")
            e("v_and_b32 v2, 31, v0")
            e("v_lshl_add_u32 v2, v2, 7, s66")
            e("v_min_u32 v2, (L_end-L_pc), v2")
            e("global_load_dword a255, v2, s[68:69]", token="pf", loose=True)
        e("v_lshrrev_b32 v1, 6, v0")
        e("v_and_b32 v0, 63, v0")
        e(f"v_readfirstlane_b32 s{S_W}, v1")
        e(f"s_and_b32 s{S_T0}, s2, 7")
        e(f"s_mul_i32 s{S_T0}, s{S_T0}, 28")
        e(f"s_lshr_b32 s{S_T1}, s2, 3")
        e(f"s_add_u32 s{S_T0}, s{S_T0}, s{S_T1}")
        e(f"s_mul_i32 s{S_T1}, s{S_T0}, 4682")
        e(f"s_lshr_b32 s{S_T1}, s{S_T1}, 16")
        e(f"s_mul_i32 s{S_R0}, s{S_T1}, 14")
        e(f"s_sub_u32 s{S_T0}, s{S_T0}, s{S_R0}")
        e(f"s_lshl_b32 s{S_C0}, s{S_T0}, 4")
        e(f"s_mov_b32 s{S_NEGA}, {fl(-APRIME)}")
        e(f"s_mov_b32 s{S_NEGA+1}, {fl(-APRIME)}")
        e(f"s_mov_b32 s{S_HIM}, 0xffff0000")
        e(f"s_movk_i32 s{S_128}, 128")
        e(f"s_movk_i32 s{S_256}, 256")
        e(f"s_mul_i32 s{S_WRB}, s{S_W}, {WR_W}")
        e(f"s_add_u32 s{S_WRB}, s{S_WRB}, {WRING}")
        e(f"s_and_b32 s{S_REP}, s2, {NREP-1}")
        e(f"s_lshl_b32 s{S_REP}, s{S_REP}, 12")
        for q in range(12):
            e(f"s_mov_b32 s{S_W1T+q}, {q*24576 - (q&3)*1024}")
            e(f"s_mov_b32 s{S_W2T+q}, {q*6144 - (q&3)*1024}")
        for j in range(4): e(f"s_mov_b32 s{S_XT+j}, {j*344064 - j*1024}")
        self.add(wait_lds_all())
        for srd, ptr, n in ((SRD_X, S_X, XBYTES), (SRD_W1, S_W1, WBYTES), (SRD_W2, S_W2, WBYTES), (SRD_OUT, S_OUT, XBYTES), (SRD_DW, S_DW, 9 * C * 2)):
            e(f"s_mov_b32 s{srd}, s{ptr}")
            e(f"s_and_b32 s{srd+1}, s{ptr+1}, 0xffff")
            e(f"s_mov_b32 s{srd+2}, {n}")
            e(f"s_mov_b32 s{srd+3}, 0x00020000")

    def phase0(self):
        e = self.e; add = self.add
        LANE = 0
        GA01, GA2, GA2L, TA1, TA2, MASK, MASKB, TMP = 1, 5, 9, 13, 14, 15, 19, 23
        AF = lambda st, f: 24 + 20 * st + 4 * f
        DC = lambda i, b: 64 + 48 * i + 4 * b
        GB = lambda st, k: 48 * st + 4 * k
        e(f"s_cmp_ge_u32 s2, {NREP}")
        e("s_cbranch_scc1 L_nozero")
        e(f"s_lshl_b32 s{S_T0}, s{S_W}, 10")
        e(f"s_add_u32 s{S_T0}, s{S_T0}, s{S_REP}")
        e(f"v_lshl_add_u32 v64, v{LANE}, 4, s{S_T0}")
        for k in range(4): e(f"v_mov_b32 v{68+k}, 0")
        e(f"global_store_dwordx4 v64, v[68:71], s[{S_WS}:{S_WS+1}] sc0 sc1", maybe=True)
        e("L_nozero:", nocheck=True)
        e(f"s_lshl_b32 s{S_T0}, s{S_W}, 10")
        e(f"v_lshl_add_u32 v72, v{LANE}, 4, s{S_T0}")
        e(f"s_add_u32 m0, s{S_T0}, {TBL}")
        e(f"buffer_load_dwordx4 v72, s[{SRD_DW}:{SRD_DW+3}], 0 offen lds", token="dw")
        XA = 80
        e(f"s_lshl_b32 s{S_T0}, s{S_W}, 3")
        e(f"v_lshrrev_b32 v73, 3, v{LANE}")
        e(f"v_add_u32 v73, s{S_T0}, v73")
        e(f"v_and_b32 v74, 7, v{LANE}")
        e("v_lshrrev_b32 v75, 1, v74")
        e("v_and_b32 v74, 1, v74")
        e("v_lshlrev_b32 v74, 4, v74")
        e(f"s_sub_u32 s{S_T1}, s{S_R0}, 1")
        e(f"s_sub_u32 s{S_T2}, s{S_C0}, 1")
        e(f"s_movk_i32 s{S_T3}, 224")
        e(f"s_movk_i32 s{S_T4}, 384")
        e(f"s_lshl_b32 s{S_T5}, s{S_W}, 10")
        e("v_mov_b32 v79, 0x80000000")
        for i in range(9):
            A = XA + i
            e(f"v_add_u32 v76, {32*i}, v73")
            e("v_mul_u32_u24 v77, 3641, v76")
            e("v_lshrrev_b32 v77, 16, v77")
            e("v_mul_u32_u24 v78, 18, v77")
            e("v_sub_u32 v76, v76, v78")
            e("v_bfe_u32 v78, v76, 1, 2")
            e("v_xor_b32 v78, v78, v75")
            e("v_lshl_add_u32 v78, v78, 5, v74")
            e(f"v_add_u32 v77, s{S_T1}, v77")
            e(f"v_add_u32 v76, s{S_T2}, v76")
            e("v_max_u32 v70, v76, v77")
            e(f"v_cmp_gt_u32 vcc, s{S_T3}, v70")
            e(f"v_mad_u32_u24 v{A}, v77, s{S_T3}, v76")
            e(f"v_mad_u32_u24 v{A}, v{A}, s{S_T4}, v78")
            e(f"s_add_u32 m0, s{S_T5}, {i*4096}")
            e(f"v_cndmask_b32 v{A}, v79, v{A}, vcc")
            e(f"buffer_load_dwordx4 v{A}, s[{SRD_X}:{SRD_X+3}], 0 offen lds", token="x0")
        for pl, so in ((1, S_128), (2, S_256)):
            for i in range(9):
                e(f"s_add_u32 m0, s{S_T5}, {pl*PLANE + i*4096}")
                e(f"buffer_load_dwordx4 v{XA+i}, s[{SRD_X}:{SRD_X+3}], s{so} offen lds", token=f"x{pl}")
        e(f"s_lshl_b32 s{S_T0}, s{S_W}, 2")
        e(f"s_min_u32 s{S_T0}, s{S_T0}, 10")
        e(f"s_mul_i32 s{S_T1}, s{S_T0}, {ROWP}")
        e(f"v_and_b32 v64, 15, v{LANE}")
        e(f"v_lshrrev_b32 v65, 4, v{LANE}")
        e("v_lshrrev_b32 v66, 1, v65")
        e("v_and_b32 v67, 1, v65")
        e("v_lshlrev_b32 v68, 4, v67")
        e(f"v_add_u32 v68, s{S_T1}, v68")
        e("v_add_u32 v69, v64, v66")
        e("v_lshl_add_u32 v70, v69, 7, v68")
        e("v_bfe_u32 v71, v69, 1, 2")
        for cu in range(4):
            e(f"v_xor_b32 v72, {cu}, v71")
            e(f"v_lshl_add_u32 v{GA01+cu}, v72, 5, v70")
        e("v_add_u32 v69, 2, v64")
        e("v_lshl_add_u32 v70, v69, 7, v68")
        e("v_bfe_u32 v71, v69, 1, 2")
        e(f"v_mul_u32_u24 v73, {ROWP}, v66")
        for cu in range(4):
            e(f"v_xor_b32 v72, {cu}, v71")
            e(f"v_lshl_add_u32 v{GA2L+cu}, v72, 5, v70")
            e(f"v_add_u32 v{GA2+cu}, v{GA2L+cu}, v73")
        e("v_lshrrev_b32 v69, 1, v64")
        e("v_lshlrev_b32 v69, 2, v69")
        e(f"v_add_u32 v69, {TBL}, v69")
        e("v_mul_u32_u24 v70, 384, v66")
        e(f"v_add_u32 v{TA1}, v69, v70")
        e("v_mul_u32_u24 v70, 1152, v66")
        e(f"v_add3_u32 v{TA2}, v69, v70, s{S_256}")
        e(f"v_add_u32 v{TA2}, 512, v{TA2}")
        e("v_lshrrev_b32 v69, 3, v64")
        e("v_and_b32 v70, 1, v64")
        e("v_mov_b32 v71, 0xffff")
        e(f"v_mov_b32 v72, s{S_HIM}")
        e("v_cmp_eq_u32 vcc, 1, v70")
        e("v_cndmask_b32 v71, v71, v72, vcc")
        e("v_cmp_eq_u32 vcc, v69, v67")
        e("v_cndmask_b32 v71, 0, v71, vcc")
        e("v_bfe_u32 v69, v64, 1, 2")
        for j in range(4):
            e(f"v_cmp_eq_u32 vcc, {j}, v69")
            e(f"v_cndmask_b32 v{MASK+j}, 0, v71, vcc")
        e("v_cmp_eq_u32 vcc, 0, v66")
        for j in range(4):
            e(f"v_cndmask_b32 v{MASKB+j}, 0, v{MASK+j}, vcc")
        W1VO0 = 23
        self.w_voffsets_w1(W1VO0, 64)
        add(wait_vm_token("dw"))
        e("s_barrier")
        e(f"s_cmp_ge_u32 s2, {NREP}")
        e("s_cbranch_scc1 L_noflag")
        e(f"s_cmp_lg_u32 s{S_W}, 0")
        e("s_cbranch_scc1 L_noflag")
        e(f"v_cmp_eq_u32 vcc, 0, v{LANE}")
        e(f"s_and_saveexec_b64 s[{S_EX}:{S_EX+1}], vcc")
        e("v_mov_b32 v64, 0")
        e("v_mov_b32 v65, 1")
        e(f"global_atomic_add v64, v65, s[{S_DBG}:{S_DBG+1}]", maybe=True)
        e(f"s_mov_b64 exec, s[{S_EX}:{S_EX+1}]")
        e("L_noflag:", nocheck=True)

        def a_reads(b):
            st = b & 1
            L = []
            for dy in range(3): L.append(I(f"ds_read_b32 v{AF(st,dy)}, v{TA1} offset:{dy*1152 + b*32}"))
            L.append(I(f"ds_read_b32 v{AF(st,3)}, v{TA2} offset:{b*32}"))
            L.append(I(f"ds_read_b32 v{AF(st,4)}, v{TA1} offset:{3072 + b*32}"))
            return L
        def a_build(b):
            st = b & 1
            L = []
            for f in range(5):
                M = MASKB if f == 4 else MASK
                for j in (3, 2, 1, 0):
                    L.append(I(f"v_and_b32 v{AF(st,f)+j}, v{AF(st,f)}, v{M+j}"))
            return L
        def g_reads(b):
            st = b & 1; cu = b & 3
            L = []
            order = [(0,0),(1,0),(0,1),(1,1),(0,2),(1,2),(0,3),(1,3),(0,4),(1,4),(0,5),(1,5)]
            for typ, r in order:
                if typ == 0: L.append(I(f"ds_read_b128 a[{GB(st,r)}:{GB(st,r)+3}], v{GA01+cu} offset:{r*ROWP}"))
                else:
                    reg = GA2L + cu if r == 5 else GA2 + cu
                    L.append(I(f"ds_read_b128 a[{GB(st,6+r)}:{GB(st,6+r)+3}], v{reg} offset:{r*ROWP}"))
            return L
        def mfmas(b):
            st = b & 1
            L = []
            seq = []
            for step in range(5):
                for i in range(4): seq.append((step, i))
            for step, i in seq:
                f, g = [(0, i), (3, 6+i), (1, i+1), (2, i+2), (4, 6+i+2)][step]
                d = DC(i, b)
                c = "0" if step == 0 else f"v[{d}:{d+3}]"
                L.append(I(f"v_mfma_f32_16x16x32_bf16 v[{d}:{d+3}], v[{AF(st,f)}:{AF(st,f)+3}], a[{GB(st,g)}:{GB(st,g)+3}], {c}"))
            return L
        def plane_step():
            return [I(f"v_add_u32 v{r}, {PLANE}, v{r}") for r in range(GA01, GA01 + 12)]

        add(a_reads(0)); add(a_build(0)); add(a_reads(1))
        if self.skip("p0t"): self.stamp("pre_x0")
        add(wait_vm_token("x0"))
        e("s_barrier")
        if self.skip("p0t"): self.stamp("x0")
        add(g_reads(0))
        for b in range(12):
            M = mfmas(b)
            fill = []
            if b == 8: self_w1 = self.w1_dma_list(0, W1VO0)
            if b >= 8: fill += self_w1[:3]; self_w1 = self_w1[3:]
            if b + 1 < 12:
                if (b + 1) % 4 == 0:
                    fill += plane_step()
                    fill += [wait_vm_token(f"x{(b+1)//4}"), I("s_barrier")]
                    if self.skip("p0t"): fill.append(Pseudo("stamp", name=f"x{(b+1)//4}"))
                    if self.timers: pass
                g = g_reads(b + 1)
                ab = a_build(b + 1)
                mix = []
                for k in range(12):
                    mix.append(g[k]); mix += ab[k*20//12:(k+1)*20//12]
                fill += mix
            out = []; k = 0; n = len(fill)
            for j, m in enumerate(M):
                out.append(m)
                upto = (j + 1) * n // 18 if j < 18 else n
                out += fill[k:min(upto, n)]; k = max(k, min(upto, n))
            for o_ in out:
                if isinstance(o_, Pseudo) and o_.op == "stamp": self.stamp(o_.meta["name"])
                else: add(o_)
            if b + 2 < 12: add(a_reads(b + 2))
        self.stamp("conv")
        add(wait_lds_all())
        e("s_barrier")

        e("v_mov_b32 v11, 0")
        e(f"global_load_dword v12, v11, s[{S_DBG}:{S_DBG+1}] sc0 sc1")
        self.bias_loads(1)
        SP = lambda i: 24 + 2 * i
        S1 = lambda i: 32 + i
        Wv, Yv, Zv = 36, 37, 38
        MM = lambda i: 40 + 2 * i
        def pairs(i): return [DC(i, 0) + 2 * k for k in range(24)]
        def reduce_bcast(scale_code):
            e(f"v_permlane32_swap_b32 v{S1(0)}, v{S1(1)}")
            e(f"v_permlane32_swap_b32 v{S1(2)}, v{S1(3)}")
            e(f"v_add_f32 v{S1(0)}, v{S1(0)}, v{S1(1)}")
            e(f"v_add_f32 v{S1(2)}, v{S1(2)}, v{S1(3)}")
            e(f"v_permlane16_swap_b32 v{S1(0)}, v{S1(2)}")
            e(f"v_add_f32 v{Wv}, v{S1(0)}, v{S1(2)}")
            scale_code(Wv)
            e(f"v_mov_b32 v{Yv}, v{Wv}")
            e(f"v_permlane16_swap_b32 v{Wv}, v{Yv}")
            e(f"v_mov_b32 v{MM(0)}, v{Wv}")
            e(f"v_mov_b32 v{MM(2)}, v{Yv}")
            e(f"v_permlane32_swap_b32 v{MM(0)}, v{Wv}")
            e(f"v_permlane32_swap_b32 v{MM(2)}, v{Yv}")
            e(f"v_mov_b32 v{MM(1)}, v{Wv}")
            e(f"v_mov_b32 v{MM(3)}, v{Yv}")
        if self.skip("p0t"): self.stamp("lnstart")
        add(align8())
        for i in range(4):
            P_ = pairs(i)
            e(f"v_pk_add_f32 v[{SP(i)}:{SP(i)+1}], v[{P_[0]}:{P_[0]+1}], v[{P_[1]}:{P_[1]+1}]")
        for k in range(2, 24):
            for i in range(4):
                P_ = pairs(i)
                e(f"v_pk_add_f32 v[{SP(i)}:{SP(i)+1}], v[{SP(i)}:{SP(i)+1}], v[{P_[k]}:{P_[k]+1}]")
        for i in range(4): e(f"v_add_f32 v{S1(i)}, v{SP(i)}, v{SP(i)+1}")
        reduce_bcast(lambda r: e(f"v_mul_f32 v{r}, {fl(1.0/192)}, v{r}"))
        add(align8())
        for k in range(24):
            for i in range(4):
                P_ = pairs(i)
                e(f"v_pk_add_f32 v[{P_[k]}:{P_[k]+1}], v[{P_[k]}:{P_[k]+1}], v[{MM(i)}:{MM(i)+1}] op_sel_hi:[1,0] neg_lo:[0,1] neg_hi:[0,1]")
        for i in range(4):
            P_ = pairs(i)
            e(f"v_pk_mul_f32 v[{SP(i)}:{SP(i)+1}], v[{P_[0]}:{P_[0]+1}], v[{P_[0]}:{P_[0]+1}]")
        for k in range(1, 24):
            for i in range(4):
                P_ = pairs(i)
                e(f"v_pk_fma_f32 v[{SP(i)}:{SP(i)+1}], v[{P_[k]}:{P_[k]+1}], v[{P_[k]}:{P_[k]+1}], v[{SP(i)}:{SP(i)+1}]")
        for i in range(4): e(f"v_add_f32 v{S1(i)}, v{SP(i)}, v{SP(i)+1}")
        def rs(r):
            e(f"v_mov_b32 v{Zv}, {fl(1e-5)}")
            e(f"v_fmac_f32 v{Zv}, {fl(1.0/192)}, v{r}")
            e(f"v_rsq_f32 v{r}, v{Zv}")
            e(f"v_mul_f32 v{r}, {fl(SG)}, v{r}")
        reduce_bcast(rs)
        if self.skip("p0t"): self.stamp("lnstats")
        LA = 13
        e(f"s_lshl_b32 s{S_T0}, s{S_W}, 2")
        e(f"s_min_u32 s{S_T0}, s{S_T0}, 10")
        e(f"s_mul_i32 s{S_T0}, s{S_T0}, {LN_T//2}")
        e(f"v_and_b32 v14, 15, v{LANE}")
        e("v_lshlrev_b32 v14, 4, v14")
        e(f"v_lshrrev_b32 v15, 5, v{LANE}")
        e("v_lshl_add_u32 v14, v15, 9, v14")
        e(f"v_bfe_u32 v15, v{LANE}, 4, 1")
        e("v_lshl_add_u32 v14, v15, 3, v14")
        e(f"v_add_u32 v{LA}, s{S_T0}, v14")
        add(align8())
        for b in range(12):
            for i in range(4):
                d = DC(i, b)
                for k in (0, 2):
                    e(f"v_pk_mul_f32 v[{d+k}:{d+k+1}], v[{d+k}:{d+k+1}], v[{MM(i)}:{MM(i)+1}] op_sel_hi:[1,0]")
            for i in range(4):
                d = DC(i, b)
                e(f"v_cvt_pk_bf16_f32 v{d}, v{d}, v{d+1}")
                e(f"v_cvt_pk_bf16_f32 v{d+1}, v{d+2}, v{d+3}")
            for i in range(4):
                d = DC(i, b)
                e(f"ds_write_b64 v{LA}, v[{d}:{d+1}] offset:{(i>>1)*LN_T + (i&1)*256 + b*1024}")
        add(wait_lds_all())
        e("s_barrier")
        self.stamp("ln")

    P1_BLO, P1_BHI, P1_ATR, P1_WVO, P1_ATOM = 1, 2, 3, 4, 5
    P1_D = (8, 24, 40); P1_T = (56, 72); P1_ACC = 88; P1_HT = 104
    NA_UNITS = 28
    @staticmethod
    def hreg(u):
        return R("a", 8 * u, 8) if u < Gen.NA_UNITS else R("v", 144 + 8 * (u - Gen.NA_UNITS), 8)
    @staticmethod
    def a1(jj):
        return R("a", 240 + 4 * jj, 4) if jj < 4 else R("v", 112 + 4 * (jj - 4), 4)
    def skip(self, tag): return tag in self.exp

    def p1_setup(self):
        e = self.e
        e(f"s_and_b32 s{S_T0}, s{S_W}, 1")
        e(f"s_mul_i32 s{S_T1}, s{S_T0}, {4*LN_T}")
        e(f"v_lshl_add_u32 v{self.P1_BLO}, v0, 4, s{S_T1}")
        e(f"s_mul_i32 s{S_T1}, s{S_T0}, {3*LN_T}")
        e(f"s_sub_u32 s{S_T1}, {3*LN_T}, s{S_T1}")
        e(f"v_lshl_add_u32 v{self.P1_BHI}, v0, 4, s{S_T1}")
        e("v_lshrrev_b32 v6, 5, v0")
        e("v_lshlrev_b32 v6, 9, v6")
        e("v_bfe_u32 v7, v0, 2, 2")
        e("v_lshl_add_u32 v6, v7, 6, v6")
        e("v_bfe_u32 v7, v0, 4, 1")
        e("v_lshl_add_u32 v6, v7, 5, v6")
        e("v_and_b32 v7, 3, v0")
        e("v_lshl_add_u32 v6, v7, 3, v6")
        e(f"v_add_u32 v{self.P1_ATR}, s{S_WRB}, v6")
        self.w_voffsets_w1(self.P1_WVO, 7)
        e("v_bfe_u32 v7, v0, 2, 2")
        e("v_and_b32 v6, 3, v0")
        e("v_lshl_add_u32 v6, v7, 3, v6")
        e("v_lshrrev_b32 v7, 5, v0")
        e("v_lshl_add_u32 v6, v7, 2, v6")
        e(f"s_mul_i32 s{S_T0}, s{S_W}, 768")
        e(f"s_add_u32 s{S_T0}, s{S_T0}, s{S_REP}")
        e(f"v_lshl_add_u32 v{self.P1_ATOM}, v6, 2, s{S_T0}")
        e(f"s_mov_b32 s{S_MSK}, 0xcccccccc")
        e(f"s_mov_b32 s{S_MSK+1}, 0xcccccccc")
        e(f"s_mov_b32 s{S_MSK1}, 0xaaaaaaaa")
        e(f"s_mov_b32 s{S_MSK1+1}, 0xaaaaaaaa")
        self.w2_voffset(self.W2VO_EARLY, 6)

    def a1_reads(self, jj):
        r = self.a1(jj)
        return [I(f"ds_read_b64_tr_b16 {r[2*qq:2*qq+2]}, v{self.P1_ATR} offset:{jj*1024 + qq*256}") for qq in range(2)]
    def b_read(self, g):
        u, jj = divmod(g, 12); t = u % 7
        base, off = (self.P1_BLO, t * LN_T) if t < 3 else (self.P1_BHI, (t - 3) * LN_T)
        b = 224 + 4 * (g % 4)
        return I(f"ds_read_b128 a[{b}:{b+3}], v{base} offset:{off + jj*1024}")
    def sq_reduce(self, m):
        A_ = self.P1_ACC
        def dpp(d, s_, ctl, bank): return I(f"v_add_f32_dpp v{d}, v{s_}, v{s_} {ctl} row_mask:0xf bank_mask:{bank}")
        L = []
        for r in range(8): L.append(dpp(A_+r, A_+r, "row_ror:8", "0x3"))
        for r in range(8): L.append(dpp(A_+r, A_+r+8, "row_ror:8", "0xc"))
        for r in range(4): L.append(dpp(A_+r, A_+r, "row_shl:4", "0x5"))
        for r in range(4): L.append(dpp(A_+r, A_+r+4, "row_shr:4", "0xa"))
        for r in range(4): L.append(dpp(A_+4+r, A_+r, "quad_perm:[2,3,0,1]", "0xf"))
        L.append(I(f"v_cndmask_b32 v{A_}, v{A_+4}, v{A_+6}, s[{S_MSK}:{S_MSK+1}]"))
        L.append(I(f"v_cndmask_b32 v{A_+1}, v{A_+5}, v{A_+7}, s[{S_MSK}:{S_MSK+1}]"))
        for r in range(2): L.append(dpp(A_+2+r, A_+r, "quad_perm:[1,0,3,2]", "0xf"))
        L.append(I(f"v_cndmask_b32 v{A_+4}, v{A_+2}, v{A_+3}, s[{S_MSK1}:{S_MSK1+1}]"))
        L.append(I(f"v_mov_b32 v6, v{A_+4}"))
        L.append(I(f"v_permlane16_swap_b32 v{A_+4}, v6"))
        L.append(I(f"v_add_f32 v6, v6, v{A_+4}"))
        L.append([I("s_mov_b32 exec_lo, 0xffff"), I("s_mov_b32 exec_hi, 0xffff"),
                  I(f"global_atomic_add_f32 v{self.P1_ATOM}, v6, s[{S_WS}:{S_WS+1}] offset:{m*128}", token="atom"),
                  I("s_mov_b64 exec, -1")])
        return L

    def phase1(self):
        e = self.e; add = self.add
        D, T, ACC, HT = self.P1_D, self.P1_T, self.P1_ACC, self.P1_HT
        NU = 42
        add(wait_vm_token("w1_0"))
        for jj in range(12): add(self.a1_reads(jj))
        for g in range(4): add(self.b_read(g))
        dma_q = []
        for n in range(NU + 2):
            tr = []
            tr_e = [I(f"v_exp_f32 v{T[(n-1)%2]+i}, v{T[(n-1)%2]+i}") for i in range(16)] if 1 <= n <= NU else []
            tr_r = [I(f"v_rcp_f32 v{T[n%2]+i}, v{T[n%2]+i}") for i in range(16)] if 2 <= n <= NU + 1 else []
            for i in range(16):
                if tr_e: tr.append(tr_e[i])
                if tr_r: tr.append(tr_r[i])
            tail = []
            u3 = n - 3
            if 0 <= u3 < self.NA_UNITS:
                h = self.hreg(u3)
                tail += [I(f"v_accvgpr_write_b32 {h[i]}, v{HT+i}") for i in range(8)]
            body = list(tr)
            if n >= 9 and (n - 2) % 7 == 0 and n <= NU + 1 and not self.skip("nored"):
                red = self.sq_reduce((n - 2) // 7 - 1)
                mix = []; k = 0
                for i, x in enumerate(body):
                    mix.append(x)
                    upto = (i + 1) * len(red) // len(body)
                    mix += red[k:upto]; k = upto
                body = mix + red[k:]
            if n % 7 == 1 and n // 7 + 1 < 6:
                dma_q = self.w1_dma_list(n // 7 + 1, self.P1_WVO)
                dma_q[0] = [I(f"v_add_u32 v{self.P1_WVO}, 64, v{self.P1_WVO}")] + dma_q[0]
            if n == 36: dma_q = self.w2_dma_list(0, self.W2VO_EARLY)
            dm = []
            for _ in range(4):
                if dma_q: dm.append(dma_q.pop(0))
            reload = (n % 7 == 6 and n // 7 + 1 < 6 and not self.skip("noreload"))
            if n < NU:
                Dn = D[n % 3]
                ntr = len(body)
                if tail or not tr:
                    gaps = [(ntr * (j + 1)) // 11 - (ntr * j) // 11 for j in range(11)] + [0]
                else:
                    keep = min(5, ntr)
                    gaps = [((ntr - keep) * (j + 1)) // 11 - ((ntr - keep) * j) // 11 for j in range(11)] + [keep]
                if reload: add(wait_vm_token(f"w1_{n//7+1}"))
                k = 0
                for jj in range(12):
                    g = 12 * n + jj
                    b = 224 + 4 * (g % 4)
                    if jj % 2 == 0:
                        b2 = 224 + 4 * ((g + 1) % 4)
                        add(need(f"a[{b}:{b+3}]", f"a[{b2}:{b2+3}]", self.a1(jj), self.a1(jj + 1)))
                    c = "0" if jj == 0 else f"v[{Dn}:{Dn+15}]"
                    e(f"v_mfma_f32_32x32x16_bf16 v[{Dn}:{Dn+15}], {self.a1(jj)}, a[{b}:{b+3}], {c}")
                    if g + 4 < 12 * NU and not self.skip("nobread"): add(self.b_read(g + 4))
                    if reload: add(self.a1_reads(jj))
                    add(body[k:k + gaps[jj]]); k += gaps[jj]
                    if dm and jj in (1, 4, 7, 10):
                        d_ = dm.pop(0)
                        if not self.skip("nodma1"): add(d_)
                add(body[k:])
                add(tail)
            else:
                add(body); add(tail)
                for d_ in dm: add(d_)
            if self.timers and n in (): self.stamp(f"E{n}")
            add(align8())
            if n >= 2:
                u = n - 2; Tb = T[n % 2]; Dc = D[u % 3]
                for i in range(0, 16, 2): e(f"v_pk_mul_f32 v[{Tb+i}:{Tb+i+1}], v[{Tb+i}:{Tb+i+1}], v[{Dc+i}:{Dc+i+1}]")
            if 1 <= n <= NU:
                Ta = T[(n - 1) % 2]
                for i in range(0, 16, 2): e(f"v_pk_add_f32 v[{Ta+i}:{Ta+i+1}], v[{Ta+i}:{Ta+i+1}], 1.0 op_sel_hi:[1,0]")
            if n >= 2:
                u = n - 2; Tb = T[n % 2]
                for i in range(0, 16, 2):
                    if u % 7 == 0: e(f"v_pk_mul_f32 v[{ACC+i}:{ACC+i+1}], v[{Tb+i}:{Tb+i+1}], v[{Tb+i}:{Tb+i+1}]")
                    else: e(f"v_pk_fma_f32 v[{ACC+i}:{ACC+i+1}], v[{Tb+i}:{Tb+i+1}], v[{Tb+i}:{Tb+i+1}], v[{ACC+i}:{ACC+i+1}]")
                h = self.hreg(u)
                for i in range(8):
                    dst = f"v{HT+i}" if u < self.NA_UNITS else str(h[i])
                    e(f"v_cvt_pk_bf16_f32 {dst}, v{Tb+2*i}, v{Tb+2*i+1}")
            if n < NU:
                Tz = T[n % 2]; Dn = D[n % 3]
                for i in range(0, 16, 2): e(f"v_pk_fma_f32 v[{Tz+i}:{Tz+i+1}], v[{Dn+i}:{Dn+i+1}], v[{Dn+i}:{Dn+i+1}], s[{S_NEGA}:{S_NEGA+1}] neg_lo:[1,0,0] neg_hi:[1,0,0]")
                for i in range(0, 16, 2): e(f"v_pk_mul_f32 v[{Tz+i}:{Tz+i+1}], v[{Tz+i}:{Tz+i+1}], v[{Dn+i}:{Dn+i+1}]")
        assert not dma_q
        add(self.sq_reduce(5))

    P2_EXR, P2_LO, P2_HI, P2_BR, P2_XO, P2_ATR, P2_SB, P2_WVO, P2_XL, P2_XDV = 0, 1, 5, 9, 10, 11, 12, 13, 14, 15
    P2_TMP, P2_S, P2_EP, P2_X, P2_POOL = 16, 20, (28, 36), (44, 46), 48
    P2_LANE = 47
    W2VO_EARLY = 7

    def w2_voffset(self, reg, t1, lane=0):
        e = self.e
        e(f"v_lshrrev_b32 v{reg}, 2, v{lane}")
        e(f"s_mul_i32 s{S_T0}, s{S_W}, 192")
        e(f"v_add_u32 v{reg}, s{S_T0}, v{reg}")
        e(f"v_mul_u32_u24 v{reg}, 384, v{reg}")
        e(f"v_and_b32 v{t1}, 3, v{lane}")
        e(f"v_lshl_add_u32 v{reg}, v{t1}, 4, v{reg}")

    def w2_dma_list(self, c, reg):
        L = []
        for q in range(12):
            grp = []
            if q % 4 == 0: grp.append(I(f"s_add_u32 m0, s{S_WRB}, {(q//4)*4096}"))
            grp.append(I(f"buffer_load_dwordx4 v{reg}, s[{SRD_W2}:{SRD_W2+3}], s{S_W2T+q} offen offset:{(q&3)*1024} lds", token=f"w2_{c}"))
            L.append(grp)
        return L
    def x_dma_list(self, c):
        L = [I(f"s_add_u32 m0, s{S_T5}, {(c&1)*4096}")]
        for j in range(4):
            L.append(I(f"buffer_load_dwordx4 v{self.P2_XDV}, s[{SRD_X}:{SRD_X+3}], s{S_XT+j} offen offset:{j*1024} lds", token=f"xs_{c}"))
        return L

    def pool(self, c, kk): return self.P2_POOL + 4 * ((12 * c + kk) % 24)
    def a2_reads(self, c, kk, r=None):
        r = self.pool(c, kk) if r is None else r
        return [I(f"ds_read_b64_tr_b16 v[{r+2*qq}:{r+2*qq+1}], v{self.P2_ATR} offset:{kk*1024 + qq*512}", token=f"a2_{c}") for qq in range(2)]
    def s_reads(self, kk, S=None):
        S = self.P2_S if S is None else S
        return [I(f"ds_read_b128 v[{S+4*qq}:{S+4*qq+3}], v{self.P2_SB} offset:{(16*kk + 8*qq)*4}") for qq in range(2)]
    def a2_scale(self, c, kk):
        r = self.pool(c, kk); T = self.P2_TMP; SV = self.P2_S + (kk >> 1); j0 = 8 * (kk & 1)
        L = []
        for jp in (0, 2):
            t = [(T, T+1), (T+2, T+3)]
            for d in range(2):
                L.append(I(f"v_lshlrev_b32 v{t[d][0]}, 16, v{r+jp+d}"))
                L.append(I(f"v_and_b32 v{t[d][1]}, s{S_HIM}, v{r+jp+d}"))
            for d in range(2):
                L.append(I(f"v_mul_f32_dpp v{t[d][0]}, v{SV}, v{t[d][0]} row_newbcast:{j0 + 2*(jp+d)} row_mask:0xf bank_mask:0xf"))
                L.append(I(f"v_mul_f32_dpp v{t[d][1]}, v{SV}, v{t[d][1]} row_newbcast:{j0 + 2*(jp+d) + 1} row_mask:0xf bank_mask:0xf"))
            for d in range(2):
                L.append(I(f"v_cvt_pk_bf16_f32 v{r+jp+d}, v{t[d][0]}, v{t[d][1]}"))
        return L

    def wave_allreduce(self, r, t):
        e = self.e
        for k in (8, 4, 2, 1):
            e(f"v_add_f32_dpp v{r}, v{r}, v{r} row_ror:{k} row_mask:0xf bank_mask:0xf")
        e(f"v_mov_b32 v{t}, v{r}")
        e(f"v_permlane16_swap_b32 v{r}, v{t}")
        e(f"v_add_f32 v{r}, v{r}, v{t}")
        e(f"v_mov_b32 v{t}, v{r}")
        e(f"v_permlane32_swap_b32 v{r}, v{t}")
        e(f"v_add_f32 v{r}, v{r}, v{t}")

    def bias_loads(self, W):
        e = self.e
        e(f"s_min_u32 s{S_T0}, s2, 191")
        e(f"s_lshl_b32 s{S_T0}, s{S_T0}, 1")
        e(f"s_mul_i32 s{S_T1}, s{S_W}, 192")
        e(f"v_add_u32 v{W+6}, s{S_T1}, v0")
        e(f"v_mul_u32_u24 v{W+7}, 384, v{W+6}")
        e(f"v_add_u32 v{W+7}, s{S_T0}, v{W+7}")
        e(f"v_lshlrev_b32 v{W+6}, 1, v{W+6}")
        for j in range(3):
            e(f"global_load_ushort v{W+3+j}, v{W+6}, s[{S_B}:{S_B+1}] offset:{128*j}")
        for j in range(3):
            e(f"global_load_ushort v{W+j}, v{W+7}, s[{S_W2}:{S_W2+1}]")
            if j < 2: e(f"v_add_u32 v{W+7}, {64*384}, v{W+7}")
    def bias_finish(self, W):
        e = self.e
        for j in range(6): e(f"v_lshlrev_b32 v{W+j}, 16, v{W+j}")
        e(f"v_mul_f32 v{W}, v{W}, v{W+3}")
        e(f"v_fmac_f32 v{W}, v{W+1}, v{W+4}")
        e(f"v_fmac_f32 v{W}, v{W+2}, v{W+5}")
        self.wave_allreduce(W, W + 1)
        e(f"s_cmp_ge_u32 s2, 192")
        e("s_cbranch_scc1 L_nobias", nocheck=True)
        e(f"s_lshl_b32 s{S_T0}, s2, 2")
        e(f"s_add_u32 s{S_T0}, s{S_T0}, {WS_BIAS}")
        e(f"v_mov_b32 v{W+1}, s{S_T0}")
        e("s_mov_b64 exec, 1")
        e(f"global_atomic_add_f32 v{W+1}, v{W}, s[{S_WS}:{S_WS+1}]", maybe=True)
        e("s_mov_b64 exec, -1")
        e("L_nobias:", nocheck=True)

    def U(self, kk): return self.P2_POOL + 8 * kk

    def grn_barrier(self):
        e = self.e; add = self.add
        LN_ = self.P2_LANE
        SUMR = [16, 20, 24, 28, 32, 36, 40, 44]
        GL = (19, 23, 27); BV = 31; T0, T1, T2 = 35, 39, 43
        e(f"v_mov_b32 v{LN_}, v0")
        e(f"s_mul_i32 s{S_T0}, s{S_W}, 192")
        e(f"v_mul_u32_u24 v{T0}, 3, v0")
        e(f"v_add_u32 v{T0}, s{S_T0}, v{T0}")
        e(f"v_lshlrev_b32 v{T0}, 1, v{T0}")
        for k in range(3): e(f"global_load_ushort v{GL[k]}, v{T0}, s[{S_G}:{S_G+1}] offset:{2*k}")
        add(wait_vm_all())
        self.stamp("atomdone")
        e("s_barrier")
        e(f"s_cmp_lg_u32 s{S_W}, 0")
        e("s_cbranch_scc1 L_arrived", nocheck=True)
        e(f"s_add_u32 s{S_T0}, s{S_REP}, {WS_CNT}")
        e(f"v_mov_b32 v{T0}, s{S_T0}")
        e(f"v_mov_b32 v{T1}, 1")
        e("s_mov_b64 exec, 1")
        e(f"global_atomic_add v{T0}, v{T1}, s[{S_WS}:{S_WS+1}]", maybe=True)
        e("s_mov_b64 exec, -1")
        e("L_arrived:", nocheck=True)
        self.p2_setup()
        for kk in range(12): add(self.a2_reads(0, kk, self.U(kk) + 4))
        for kk in range(12):
            u = self.U(kk)
            for j in range(4):
                e(f"v_lshlrev_b32 v{u+2*j}, 16, v{u+4+j}")
                e(f"v_and_b32 v{u+2*j+1}, s{S_HIM}, v{u+4+j}")
        e(f"v_add_u32 v{self.P2_WVO}, 64, v{self.P2_WVO}")
        for d_ in self.w2_dma_list(1, self.P2_WVO): add(d_)
        e(f"s_cmp_lg_u32 s{S_W}, 0")
        e("s_cbranch_scc1 L_polled", nocheck=True)
        add(cond_begin())
        e(f"v_lshlrev_b32 v{T0}, 12, v{LN_}")
        e(f"v_add_u32 v{T0}, {WS_CNT}, v{T0}")
        e("s_mov_b64 exec, 0xff")
        e(f"s_mov_b32 s{S_T4}, 0")
        e("L_poll:", nocheck=True)
        e(f"global_load_dword v{T1}, v{T0}, s[{S_WS}:{S_WS+1}] sc0 sc1", maybe=True)
        e("s_waitcnt vmcnt(0)")
        e(f"v_cmp_gt_u32 vcc, {NWG//NREP}, v{T1}")
        e("s_nop 1")
        e("s_and_b64 vcc, vcc, exec")
        e("s_cbranch_vccz L_pollok", nocheck=True)
        e("s_sleep 1")
        e(f"s_add_u32 s{S_T4}, s{S_T4}, 1")
        e(f"s_cmp_lt_u32 s{S_T4}, 0x40000")
        e("s_cbranch_scc1 L_poll", nocheck=True)
        e("L_pollok:", nocheck=True)
        e("s_mov_b64 exec, -1")
        add(cond_end())
        e("L_polled:", nocheck=True)
        e("s_barrier")
        self.stamp("barrier")
        e(f"s_mul_i32 s{S_T0}, s{S_W}, 768")
        e(f"v_mul_u32_u24 v{T0}, 12, v{LN_}")
        e(f"v_add_u32 v{T0}, s{S_T0}, v{T0}")
        for r in range(NREP):
            e(f"global_load_dwordx3 v[{SUMR[r]}:{SUMR[r]+2}], v{T0}, s[{S_WS}:{S_WS+1}] sc0 sc1")
            if r < NREP - 1: e(f"v_add_u32 v{T0}, {WS_PAGE}, v{T0}")
        e(f"v_mul_u32_u24 v{T1}, 12, v{LN_}")
        e(f"v_add_u32 v{T2}, {WS_BIAS}, v{T1}")
        BVS = (31, self.P2_BR, T2)
        e(f"global_load_dword v{BVS[0]}, v{T2}, s[{S_WS}:{S_WS+1}] sc0 sc1")
        e(f"global_load_dword v{BVS[1]}, v{T2}, s[{S_WS}:{S_WS+1}] offset:4 sc0 sc1")
        e(f"global_load_dword v{BVS[2]}, v{T2}, s[{S_WS}:{S_WS+1}] offset:8 sc0 sc1")
        G0 = SUMR[0]
        for r in range(1, NREP):
            for k in range(3): e(f"v_add_f32 v{G0+k}, v{G0+k}, v{SUMR[r]+k}")
        e(f"v_mov_b32 v{T0}, {fl(1e-6)}")
        e(f"s_mov_b32 s{S_T1}, {fl(1.0/(SG*SG))}")
        for k in range(3): e(f"v_fma_f32 v{G0+k}, v{G0+k}, s{S_T1}, v{T0}")
        for k in range(3): e(f"v_sqrt_f32 v{G0+k}, v{G0+k}")
        e(f"s_mul_i32 s{S_T0}, s{S_W}, 1536")
        e(f"s_add_u32 s{S_T0}, s{S_T0}, {TB2}")
        e(f"v_add_u32 v{T1}, s{S_T0}, v{T1}")
        for k in range(3):
            e(f"v_mul_f32 v{BVS[k]}, 0.5, v{BVS[k]}")
            e(f"ds_write_b32 v{T1}, v{BVS[k]} offset:{768 + 4*k}")
        e(f"v_add_f32 v{T0}, v{G0}, v{G0+1}")
        e(f"v_add_f32 v{T0}, v{T0}, v{G0+2}")
        self.wave_allreduce(T0, T2)
        e(f"s_lshl_b32 s{S_T0}, s{S_W}, 2")
        e(f"s_add_u32 s{S_T0}, s{S_T0}, {MISC}")
        e(f"v_mov_b32 v{T2}, s{S_T0}")
        e(f"ds_write_b32 v{T2}, v{T0}")
        add(wait_lds_all())
        e("s_barrier")
        e(f"v_mov_b32 v{T2}, {MISC}")
        e(f"ds_read_b128 v[28:31], v{T2}")
        e("v_add_f32 v28, v28, v29")
        e("v_add_f32 v30, v30, v31")
        e("v_add_f32 v28, v28, v30")
        e(f"v_mov_b32 v29, {fl(1e-6)}")
        e(f"v_fmac_f32 v29, {fl(1.0/768)}, v28")
        e("v_rcp_f32 v29, v29")
        e(f"v_mul_f32 v29, {fl(1.0/SG)}, v29")
        e(f"v_mov_b32 v30, {fl(1.0/SG)}")
        for k in range(3):
            e(f"v_lshlrev_b32 v{GL[k]}, 16, v{GL[k]}")
            e(f"v_mul_f32 v{GL[k]}, v{GL[k]}, v{G0+k}")
            e(f"v_fma_f32 v{GL[k]}, v{GL[k]}, v29, v30")
            e(f"ds_write_b32 v{T1}, v{GL[k]} offset:{4*k}")
        self.stamp("svec")

    def p2_setup(self):
        e = self.e
        LO, HI, L_ = self.P2_LO, self.P2_HI, self.P2_LANE
        a_, b_, c_, d_ = 32, 33, 34, 36
        e(f"v_and_b32 v{a_}, 31, v{L_}")
        e(f"v_and_b32 v{b_}, 7, v{a_}")
        e(f"v_bfe_u32 v{c_}, v{a_}, 4, 1")
        e(f"v_xor_b32 v{b_}, v{b_}, v{c_}")
        e(f"v_lshrrev_b32 v{c_}, 5, v{L_}")
        e(f"s_lshr_b32 s{S_T0}, s{S_W}, 1")
        e(f"s_mul_i32 s{S_T0}, s{S_T0}, {EXP}")
        e(f"s_and_b32 s{S_T1}, s{S_W}, 1")
        e(f"s_mul_i32 s{S_T2}, s{S_T1}, {4*4096}")
        e(f"s_add_u32 s{S_T2}, s{S_T2}, s{S_T0}")
        e(f"s_mul_i32 s{S_T3}, s{S_T1}, {3*4096}")
        e(f"s_sub_u32 s{S_T3}, s{S_T0}, s{S_T3}")
        e(f"v_lshlrev_b32 v{a_}, 7, v{a_}")
        for q in range(4):
            e(f"v_add_u32 v{d_}, {2*q}, v{c_}")
            e(f"v_xor_b32 v{d_}, v{d_}, v{b_}")
            e(f"v_lshl_add_u32 v{d_}, v{d_}, 4, v{a_}")
            e(f"v_add_u32 v{LO+q}, s{S_T2}, v{d_}")
            e(f"v_add_u32 v{HI+q}, s{S_T3}, v{d_}")
        e(f"v_lshlrev_b32 v{b_}, 8, v{c_}")
        e(f"v_bfe_u32 v{d_}, v{L_}, 2, 2")
        e(f"v_lshl_add_u32 v{b_}, v{d_}, 6, v{b_}")
        e(f"v_bfe_u32 v{d_}, v{L_}, 4, 1")
        e(f"v_lshl_add_u32 v{b_}, v{d_}, 5, v{b_}")
        e(f"v_and_b32 v{d_}, 3, v{L_}")
        e(f"v_lshl_add_u32 v{b_}, v{d_}, 3, v{b_}")
        e(f"v_add_u32 v{self.P2_ATR}, s{S_WRB}, v{b_}")
        e(f"s_mul_i32 s{S_T0}, s{S_W}, 1536")
        e(f"s_add_u32 s{S_T0}, s{S_T0}, {TB2}")
        e(f"v_lshl_add_u32 v{self.P2_SB}, v{c_}, 4, s{S_T0}")
        self.w2_voffset(self.P2_WVO, d_, L_)
        e(f"s_lshl_b32 s{S_T0}, s{S_W}, 3")
        e(f"v_lshrrev_b32 v{d_}, 3, v{L_}")
        e(f"v_add_u32 v{a_}, s{S_T0}, v{d_}")
        e(f"v_and_b32 v{b_}, 7, v{a_}")
        e(f"v_bfe_u32 v{c_}, v{a_}, 4, 1")
        e(f"v_xor_b32 v{b_}, v{b_}, v{c_}")
        e(f"v_and_b32 v{c_}, 7, v{L_}")
        e(f"v_xor_b32 v{b_}, v{b_}, v{c_}")
        e(f"v_lshlrev_b32 v{b_}, 4, v{b_}")
        e(f"v_lshl_add_u32 v{self.P2_EXR}, v{a_}, 7, v{b_}")
        e(f"s_lshl_b32 s{S_T5}, s{S_W}, 13")
        e(f"s_add_u32 s{S_T5}, s{S_T5}, {XST}")
        e(f"v_lshlrev_b32 v{b_}, 3, v{c_}")
        e(f"v_lshl_add_u32 v{b_}, v{d_}, 6, v{b_}")
        e(f"v_add_u32 v{self.P2_XL}, s{S_T5}, v{b_}")
        e(f"s_lshr_b32 s{S_T0}, s{S_W}, 1")
        e(f"s_add_u32 s{S_T0}, s{S_T0}, s{S_R0}")
        e(f"s_mul_i32 s{S_T0}, s{S_T0}, 224")
        e(f"s_add_u32 s{S_T0}, s{S_T0}, s{S_C0}")
        e(f"s_and_b32 s{S_T1}, s{S_W}, 1")
        e(f"s_lshl_b32 s{S_T1}, s{S_T1}, 3")
        e(f"s_add_u32 s{S_T0}, s{S_T0}, s{S_T1}")
        e(f"v_add_u32 v{a_}, s{S_T0}, v{d_}")
        e(f"v_mul_u32_u24 v{a_}, 384, v{a_}")
        e(f"v_lshl_add_u32 v{self.P2_XO}, v{c_}, 3, v{a_}")
        e(f"v_bfe_u32 v{a_}, v{L_}, 2, 3")
        e(f"v_add_u32 v{a_}, s{S_T0}, v{a_}")
        e(f"v_mul_u32_u24 v{a_}, 384, v{a_}")
        e(f"v_and_b32 v{b_}, 3, v{L_}")
        e(f"v_lshl_add_u32 v{a_}, v{b_}, 4, v{a_}")
        e(f"v_lshrrev_b32 v{b_}, 5, v{L_}")
        e(f"v_mul_u32_u24 v{b_}, 172032, v{b_}")
        e(f"v_add_u32 v{self.P2_XDV}, v{a_}, v{b_}")
        for t in range(1, 7): e(f"s_mov_b32 s{S_W1T+t}, {t*172032}")
        e(f"s_and_b32 s{S_T1}, s{S_W}, 1")
        e(f"s_sub_u32 s{S_MSK}, 0, s{S_T1}")
        e(f"s_mov_b32 s{S_MSK+1}, s{S_MSK}")

    def phase2(self):
        e = self.e; add = self.add
        EXR, LO, HI, BR, XO, XL, SB = self.P2_EXR, self.P2_LO, self.P2_HI, self.P2_BR, self.P2_XO, self.P2_XL, self.P2_SB
        TMP = self.P2_TMP
        D2 = (224, 240)
        NT = 42
        SB3 = (20, 28, 36)
        for kk in range(3): add(self.s_reads(kk, SB3[kk]))
        def cinit(n):
            c, i = divmod(n, 7); d = D2[n % 2]
            L = []
            for q in range(4):
                dst = f"a[{d+4*q}:{d+4*q+3}]"
                if i <= 2: L.append([I(f"ds_read_b128 {dst}, v{SB} offset:{768 + c*128 + q*32}")])
                elif i >= 4: L.append([I(f"ds_read_b128 {dst}, v{HI+q} offset:{i*4096}")])
                else:
                    L.append([I(f"v_add_u32 v{BR}, {hx(768 + c*128 + q*32 - 3*4096)}, v{SB}"),
                              I(f"v_cndmask_b32 v{BR}, v{BR}, v{HI+q}, s[{S_MSK}:{S_MSK+1}]"),
                              I(f"ds_read_b128 {dst}, v{BR} offset:{3*4096}")])
            return L
        for g_ in cinit(0): add(g_)
        add(align8())
        for kk in range(12):
            u = self.U(kk); S = SB3[kk % 3]; r = self.pool(0, kk)
            for j in range(4): e(f"v_pk_mul_f32 v[{u+2*j}:{u+2*j+1}], v[{u+2*j}:{u+2*j+1}], v[{S+2*j}:{S+2*j+1}]")
            if kk + 3 < 12: add(self.s_reads(kk + 3, S))
            for j in range(4): e(f"v_cvt_pk_bf16_f32 v{r+j}, v{u+2*j}, v{u+2*j+1}")
        L_ = self.P2_LANE
        e(f"v_bfe_u32 v{TMP}, v{L_}, 2, 2")
        e(f"v_lshlrev_b32 v{TMP}, 5, v{TMP}")
        e(f"v_and_b32 v{TMP+1}, 3, v{L_}")
        e(f"v_lshl_add_u32 v{TMP}, v{TMP+1}, 2, v{TMP}")
        e(f"v_lshrrev_b32 v{TMP+1}, 5, v{L_}")
        e(f"v_lshl_add_u32 v{TMP}, v{TMP+1}, 4, v{TMP}")
        e(f"s_mul_i32 s{S_T0}, s{S_W}, 1536")
        e(f"s_add_u32 s{S_T0}, s{S_T0}, {TB2}")
        e(f"v_add_u32 v{TMP}, s{S_T0}, v{TMP}")
        for a_ in range(6): e(f"ds_read_b32 v{self.P2_S + a_}, v{TMP} offset:{a_*128}")
        self.stamp("scale0")

        def ex_write(n, q):
            c, i = divmod(n, 7); d = D2[n % 2]
            base = (LO if i <= 2 else HI) + q
            return I(f"ds_write_b128 v{base}, a[{d+4*q}:{d+4*q+3}] offset:{i*4096}", token="xw")
        EPS = [(0, 5, 5), (4, 6, 6), (1, 6, 7), (5, 7, 8), (2, 8, 9), (6, 9, 10), (3, 10, 11)]
        rd_at = {}; va_at = {}
        seq_id = 0
        for c in range(6):
            for (t, sr_, sv) in EPS:
                job = (c, t, seq_id % 2); seq_id += 1
                rd_at.setdefault(7*c + sr_, []).append(job); va_at.setdefault(7*c + sv, []).append(job)
        def ep_reads(job, ep=None, xr=None):
            c, t, st = job
            ep = self.P2_EP[st] if ep is None else ep; xr = self.P2_X[st] if xr is None else xr
            return [I(f"ds_read_b128 v[{ep}:{ep+3}], v{EXR} offset:{t*4096}"),
                    I(f"ds_read_b128 v[{ep+4}:{ep+7}], v{EXR} offset:{EXP + t*4096}"),
                    I(f"ds_read_b64 v[{xr}:{xr+1}], v{XL} offset:{(c&1)*4096 + (t>>1)*1024 + (t&1)*512}")]
        def ep_valu(job, ep=None, xr=None, tail_off=""):
            c, t, st = job
            ep = self.P2_EP[st] if ep is None else ep; xr = self.P2_X[st] if xr is None else xr
            fa, fb = ep, ep + 4
            L = [I(f"v_add_f32 v{fa+r}, v{fa+r}, v{fb+r}") for r in range(4)]
            L += [I(f"v_lshlrev_b32 v{fb}, 16, v{xr}"), I(f"v_and_b32 v{fb+1}, s{S_HIM}, v{xr}"),
                  I(f"v_lshlrev_b32 v{fb+2}, 16, v{xr+1}"), I(f"v_and_b32 v{fb+3}, s{S_HIM}, v{xr+1}")]
            L += [I(f"v_add_f32 v{fa+r}, v{fa+r}, v{fb+r}") for r in range(4)]
            L += [I(f"v_cvt_pk_bf16_f32 v{fb}, v{fa}, v{fa+1}"), I(f"v_cvt_pk_bf16_f32 v{fb+1}, v{fa+2}, v{fa+3}")]
            so = f"s{S_W1T + t}" if t else "0"
            L.append([I(f"buffer_store_dwordx2 v[{fb}:{fb+1}], v{XO}, s[{SRD_OUT}:{SRD_OUT+3}], {so} offen{tail_off}")])
            return L

        dma_q = []
        SCALE_AT = {1: (0, 1), 2: (2, 3), 3: (4, 5), 4: (6, 7), 5: (8, 9), 6: (10, 11)}
        for n in range(NT):
            c, i = divmod(n, 7)
            G = [[] for _ in range(12)]
            nxt = c + 1 < 6
            jobs_r = rd_at.get(n, []); jobs_v = va_at.get(n, [])
            NV = [[] for _ in range(12)]
            PRE = [[] for _ in range(12)]
            VA = [[] for _ in range(12)]
            for job in jobs_r:
                if job[1] == 0: PRE[0].append(wait_vm_token(f"xs_{job[0]}"))
                NV[0] += ep_reads(job)
            if nxt and i == 0:
                PRE[0].append(wait_vm_token(f"w2_{c+1}"))
                rr = [x for kk in range(12) for x in self.a2_reads(c + 1, kk)]
                for gp, cnt in ((0, 6), (1, 2), (3, 2), (5, 2), (7, 2), (9, 3), (10, 3), (11, 4)):
                    NV[gp] += rr[:cnt]; rr = rr[cnt:]
                assert not rr
            if n >= 1:
                for q, gp in enumerate((1, 3, 5, 7)): NV[gp].append(ex_write(n - 1, q))
            if n + 1 < NT:
                ci = cinit(n + 1)
                for q, gp in enumerate((9, 9, 10, 10)):
                    NV[gp] = ci[q][-1:] + NV[gp] if q % 2 == 0 else NV[gp] + ci[q][-1:]
                mixed = [x for q in range(4) for x in ci[q][:-1]]
            else: mixed = []
            sa = sb = []
            if nxt and i in SCALE_AT:
                ka, kb = SCALE_AT[i]
                sa, sb = self.a2_scale(c + 1, ka), self.a2_scale(c + 1, kb)
            ev = []; st_ = []
            for job in jobs_v:
                x_ = ep_valu(job); ev += x_[:-1]; st_.append(x_[-1])
            vmq = []
            if nxt and i == 2 and c + 2 < 6:
                dma_q = self.w2_dma_list(c + 2, self.P2_WVO)
                dma_q[0] = [wait_lds_token(f"a2_{c+1}"), I(f"v_add_u32 v{self.P2_WVO}, 64, v{self.P2_WVO}")] + dma_q[0]
            if i in (2, 3, 4):
                for _ in range(4):
                    if dma_q: vmq.append(dma_q.pop(0))
            xl = None
            if i == 5 and 1 <= c and c + 1 < 6: xl = self.x_dma_list(c + 1); bump = True
            if c == 0 and i in (0, 5): xl = self.x_dma_list(1 if i else 0); bump = bool(i)
            if xl:
                vmq = [([I(f"v_add_u32 v{self.P2_XDV}, 64, v{self.P2_XDV}")] if bump else []) + [xl[0], xl[1]], [xl[2]], [xl[3]], [xl[4]]]
            for gp, grp in zip((2, 4, 6, 11), vmq):
                PRE[gp] += grp[:-1]
                NV[gp] = [grp[-1]] + NV[gp]
            for s_ in st_:
                PRE[8] += s_[:-1]; NV[8].append(s_[-1])
            if i == 4 and c >= 1: VA[8].append(I(f"v_add_u32 v{XO}, 64, v{XO}"))
            va = sa[:10] + ev + sa[10:] + sb if sa else ev
            cap = {0: 4, 1: 1, 2: 6, 3: 1, 4: 6, 5: 1, 6: 6, 7: 1, 8: 6, 9: 5, 10: 5, 11: 6}
            for gp in range(12):
                cap[gp] = max(0, cap[gp] - max(0, len(NV[gp]) - 1) * (1 if gp not in (1, 3, 5, 7) else 0) + (2 if gp == 0 else 0) - len(PRE[(gp + 1) % 12] if gp < 11 else []))
            order = list(range(12)) if sa else [4, 5, 6, 7]
            need_before8 = (10 if sa else 0) + len(ev)
            over = max(0, len(va) - sum(cap[gp] for gp in order))
            k = 0
            free = [gp for gp in order if gp not in (1, 3, 5, 7)]
            for j in range(over): cap[free[j % len(free)]] += 1
            for gp in order:
                take = cap[gp]
                if gp == 7 or gp == order[-1]: take = max(take, (need_before8 - k) if gp == 7 else len(va) - k) if gp == 7 else len(va) - k
                VA[gp] += va[k:k + take]; k = min(len(va), k + take)
            assert k == len(va), (n, k, len(va))
            if mixed:
                ci_ = [ci[q] for q in range(4)]
                NV[9] = [x for x in NV[9] if not any(x is y[-1] for y in ci_)]
                NV[10] = [x for x in NV[10] if not any(x is y[-1] for y in ci_)]
                VA[8] += ci_[0][:-1]; NV[9] = [ci_[0][-1]] + NV[9]
                VA[9] = ci_[1] + VA[9]
                VA[9] += ci_[2][:-1]; NV[10] = [ci_[2][-1]] + NV[10]
                VA[10] = ci_[3] + VA[10]
            for k_ in range(12):
                G[k_] = NV[k_] + VA[k_] + (PRE[k_ + 1] if k_ < 11 else [])
            G_pre0 = PRE[0]
            def flat(x):
                for y in x:
                    if isinstance(y, (list, tuple)): yield from flat(y)
                    else: yield y
            def drop(pred):
                for k_ in range(12): G[k_] = [y for y in flat(G[k_]) if not pred(y)]
            if self.skip("nostore"): drop(lambda y: y.kind == "vm_store")
            if self.skip("nodma2"): drop(lambda y: y.kind == "dma")
            if self.skip("noxw"): drop(lambda y: y.kind == "ds_write")
            if self.skip("novalu2"): drop(lambda y: y.is_valu())
            if self.skip("nodsr2"): drop(lambda y: y.kind == "ds_read")
            if self.skip("nopool"): drop(lambda y: y.kind == "ds_read" and "_tr_" in y.op)
            d = D2[n % 2]
            if not self.skip("nowaitvm"): add(G_pre0)
            for kk in range(12):
                u = 7 * (kk >> 1) + i
                hb = self.hreg(u)[4*(kk & 1):4*(kk & 1)+4]
                a_ = self.pool(c, kk)
                e(f"v_mfma_f32_32x32x16_bf16 a[{d}:{d+15}], v[{a_}:{a_+3}], {hb}, a[{d}:{d+15}]")
                add(G[kk])
            add(wait_lds_token("xw"))
            if not self.skip("nobar2"): e("s_barrier")
        assert not dma_q
        self.stamp("p2main")
        for q in range(4): add(ex_write(NT - 1, q))
        left_v = [j for n in range(NT, NT + 6) for j in va_at.get(n, [])]
        left_r = [j for n in range(NT, NT + 6) for j in rd_at.get(n, [])]
        P = self.P2_POOL
        regs = {}
        early = [j for j in left_r if j[1] in (5, 2)]; late = [j for j in left_r if j[1] in (6, 3)]
        for k, j in enumerate(early + late): regs[j] = (P + 12 * k, P + 12 * k + 8)
        for j in early: add(ep_reads(j, *regs[j]))
        for j in left_v:
            if j not in left_r: add(ep_valu(j))
        for j in early: add(ep_valu(j, *regs[j]))
        add(wait_lds_token("xw"))
        e("s_barrier")
        for j in late: add(ep_reads(j, *regs[j]))
        for j in late: add(ep_valu(j, *regs[j]))


    def dump_h(self):
        e = self.e
        e(f"s_lshl_b32 s{S_T0}, s2, 2")
        e(f"s_add_u32 s{S_T0}, s{S_T0}, s{S_W}")
        e(f"s_mul_i32 s{S_T0}, s{S_T0}, {336*256}")
        e(f"s_add_u32 s{S_T0}, s{S_T0}, {WS_DBG}")
        e(f"v_lshl_add_u32 v1, v0, 2, s{S_T0}")
        for u in range(42):
            h = self.hreg(u)
            for i in range(8):
                e(f"global_store_dword v1, {h[i]}, s[{S_WS}:{S_WS+1}] offset:{i*256}")
            e("v_add_u32 v1, 2048, v1")
            self.add(wait_vm_all())

    def w_voffsets_w1(self, reg, tmp):
        e = self.e
        e(f"v_lshrrev_b32 v{reg}, 2, v0")
        e(f"v_mul_u32_u24 v{reg}, 1536, v{reg}")
        e(f"v_and_b32 v{tmp}, 3, v0")
        e(f"v_lshl_add_u32 v{reg}, v{tmp}, 4, v{reg}")
        e(f"s_mul_i32 s{S_T0}, s{S_W}, 384")
        e(f"v_add_u32 v{reg}, s{S_T0}, v{reg}")
    def w1_dma_list(self, m, reg):
        L = []
        for q in range(12):
            grp = []
            if q % 4 == 0: grp.append(I(f"s_add_u32 m0, s{S_WRB}, {(q//4)*4096}"))
            grp.append(I(f"buffer_load_dwordx4 v{reg}, s[{SRD_W1}:{SRD_W1+3}], s{S_W1T+q} offen offset:{(q&3)*1024} lds", token=f"w1_{m}"))
            L.append(grp)
        return L
    def w1_dma(self, m, reg):
        for g in self.w1_dma_list(m, reg): self.add(g)

    def dump_lds(self, nbytes, per_wg):
        e = self.e
        e(f"s_mul_i32 s{S_T0}, s2, {per_wg}")
        e(f"s_add_u32 s{S_T0}, s{S_T0}, {WS_DBG}")
        e(f"s_lshl_b32 s{S_T1}, s{S_W}, 10")
        e(f"v_lshl_add_u32 v1, v0, 4, s{S_T1}")
        e(f"v_add_u32 v2, s{S_T0}, v1")
        for k in range(0, nbytes, 4096):
            e(f"ds_read_b128 v[4:7], v1")
            e(f"global_store_dwordx4 v2, v[4:7], s[{S_WS}:{S_WS+1}]")
            e("v_add_u32 v1, 4096, v1")
            e("v_add_u32 v2, 4096, v2")
            e("s_nop 1")
        self.add(wait_vm_all())

    def finish(self):
        e = self.e
        self.flush_stamps()
        e("L_end:", nocheck=True)
        e("s_endpgm")

    def build(self):
        self.prologue()
        self.stamp("start")
        self.phase0()
        if self.stage == 0:
            self.add(wait_vm_all())
            self.dump_lds(86016, 86016)
            return self.finish()
        self.flag_check()
        self.bias_finish(1)
        self.p1_setup()
        self.stamp("p1start")
        self.phase1()
        self.stamp("p1")
        if self.stage == 1:
            self.add(wait_vm_all())
            self.dump_h()
            return self.finish()
        self.grn_barrier()
        self.phase2()
        self.stamp("p2")
        self.finish()

    def flag_check(self):
        e = self.e
        e(f"v_readfirstlane_b32 s{S_T0}, v12")
        e(f"s_cmp_ge_u32 s{S_T0}, {NREP}")
        e("s_cbranch_scc1 L_flagok", nocheck=True)
        self.add(cond_begin())
        e("v_mov_b32 v11, 0")
        e(f"s_mov_b32 s{S_T4}, 0")
        e("L_flag:", nocheck=True)
        e("s_sleep 2")
        e(f"s_add_u32 s{S_T4}, s{S_T4}, 1")
        e(f"s_cmp_ge_u32 s{S_T4}, 0x40000")
        e("s_cbranch_scc1 L_flagok", nocheck=True)
        e(f"global_load_dword v12, v11, s[{S_DBG}:{S_DBG+1}] sc0 sc1", maybe=True)
        e("s_waitcnt vmcnt(0)")
        e(f"v_readfirstlane_b32 s{S_T0}, v12")
        e(f"s_cmp_ge_u32 s{S_T0}, {NREP}")
        e("s_cbranch_scc0 L_flag", nocheck=True)
        self.add(cond_end())
        e("L_flagok:", nocheck=True)

def wrap(body, lds=LDS_TOTAL):
    return f"""; fused dwconv3x3 + LayerNorm + GEMM + GELU + GRN + GEMM + residual, one persistent workgroup per CU
; @launch grid=({NWG},1,1) block=(256,1,1) lds={lds}
.amdgcn_target "amdgcn-amd-amdhsa--gfx950"
.text
.globl {KNAME}
.p2align 8
.type {KNAME},@function
{KNAME}:
{body}
.section .rodata,"a"
.p2align 6
.amdhsa_kernel {KNAME}
  .amdhsa_next_free_vgpr 512
  .amdhsa_next_free_sgpr 102
  .amdhsa_accum_offset 256
  .amdhsa_group_segment_fixed_size 0
  .amdhsa_kernarg_size 72
  .amdhsa_user_sgpr_count 2
  .amdhsa_user_sgpr_kernarg_segment_ptr 1
  .amdhsa_system_sgpr_workgroup_id_x 1
  .amdhsa_float_denorm_mode_32 3
.end_amdhsa_kernel
"""

def generate(stage=99, timers=False, verbose=False, exp=()):
    g = Gen(stage, timers, exp)
    g.build()
    ins, info = finalize(g.p.ins, verbose)
    return wrap(render(ins)), info

if __name__ == "__main__":
    import argparse
    ap = argparse.ArgumentParser()
    ap.add_argument("--stage", type=int, default=99)
    ap.add_argument("--timers", action="store_true")
    ap.add_argument("-o", default="out.s")
    ap.add_argument("-v", action="store_true")
    A = ap.parse_args()
    txt, info = generate(A.stage, A.timers, A.v)
    open(A.o, "w").write(txt)
    print(info)
```
